```python
import torch

def _softmax(x, axis=-1):
    return torch.softmax(x, dim=axis)
def _gelu(x):
    return torch.nn.functional.gelu(x, approximate="tanh")
def _silu(x):
    return torch.nn.functional.silu(x)
def _sigmoid(x):
    return torch.sigmoid(x)
def _layernorm(x, axis=-1, eps=1e-5):
    m = x.mean(dim=axis, keepdim=True)
    v = x.var(dim=axis, keepdim=True, unbiased=False)
    return (x - m) / torch.sqrt(v + eps)
def _scatter_add(tgt, idx, src, axis=0):
    return tgt.clone().index_add_(axis, idx, src)
def _segment_sum(src, seg, n):
    out = torch.zeros((n,) + src.shape[1:], dtype=src.dtype)
    return out.index_add_(0, seg, src)
def _pad(x, pw):
    flat = tuple(v for pair in reversed(pw) for v in pair)
    return torch.nn.functional.pad(x, flat)

kernel_name = 'concat_heads__mha_block_cached__gqa_block_cached__near_ridge'

def setup_inputs():

    _w = (lambda a: (lambda t: t.to(torch.bfloat16) if t.is_floating_point() else t)(torch.as_tensor(a)))
    def _A_setup():
        B, Sq, D = 16, 96, 576
        H, Sk, Dh = 32, 512, 128
        return {
            "x": _w((lambda *s: torch.randn(*s, dtype=torch.bfloat16) * 0.8)(B, Sq, D)),
            "k_cache": _w((lambda *s: torch.randn(*s, dtype=torch.bfloat16) * 0.8)(B, H, Sk, Dh)),
            "v_cache": _w((lambda *s: torch.randn(*s, dtype=torch.bfloat16) * 0.05)(B, H, Sk, Dh)),
            "wq": _w((lambda *s: torch.randn(*s, dtype=torch.bfloat16) * 0.8)(D, H * Dh) * (D ** -0.5)),
            "wo": _w((lambda *s: torch.randn(*s, dtype=torch.bfloat16) * 0.05)(H * Dh, D) * ((H * Dh) ** -0.5)),
        }
    _A_in = _A_setup()

    def _B_setup():
        B, Sq, D = 16, 96, 576
        Hq, Hkv, Sk, Dh = 32, 32, 512, 128
        assert Hq % Hkv == 0, (Hq, Hkv)
        return {
            "x": _w((lambda *s: torch.randn(*s, dtype=torch.bfloat16) * 0.8)(B, Sq, D)),
            "k_cache": _w((lambda *s: torch.randn(*s, dtype=torch.bfloat16) * 0.8)(B, Hkv, Sk, Dh)),
            "v_cache": _w((lambda *s: torch.randn(*s, dtype=torch.bfloat16) * 0.05)(B, Hkv, Sk, Dh)),
            "wq": _w((lambda *s: torch.randn(*s, dtype=torch.bfloat16) * 0.8)(D, Hq * Dh) * (D ** -0.5)),
            "wo": _w((lambda *s: torch.randn(*s, dtype=torch.bfloat16) * 0.05)(Hq * Dh, D) * ((Hq * Dh) ** -0.5)),
        }
    _B_in = _B_setup()

    return {
        "A_x": _A_in["x"],
        "A_k_cache": _A_in["k_cache"],
        "A_v_cache": _A_in["v_cache"],
        "A_wq": _A_in["wq"],
        "A_wo": _A_in["wo"],
        "B_x": _B_in["x"],
        "B_k_cache": _B_in["k_cache"],
        "B_v_cache": _B_in["v_cache"],
        "B_wq": _B_in["wq"],
        "B_wo": _B_in["wo"],
    }

def reference(A_x, A_k_cache, A_v_cache, A_wq, A_wo, B_x, B_k_cache, B_v_cache, B_wq, B_wo):
    def _A_ref(x, k_cache, v_cache, wq, wo):
        B, Sq, D = x.shape
        H, Dh = 32, 128
        q = (lambda x, *d: x.permute(*d))((x @ wq).reshape(B, Sq, H, Dh), 0, 2, 1, 3)
        scores = torch.einsum("bhqd,bhkd->bhqk", q, k_cache) * (Dh ** -0.5)
        p = _softmax(scores, axis=-1)
        o = torch.einsum("bhqk,bhkd->bhqd", p, v_cache)
        return (lambda x, *d: x.permute(*d))(o, 0, 2, 1, 3).reshape(B, Sq, H * Dh) @ wo

    def _B_ref(x, k_cache, v_cache, wq, wo):
        B, Sq, D = x.shape
        Hq, Dh = 32, 128
        Hkv = k_cache.shape[1]
        rep = Hq // Hkv
        q = (lambda x, *d: x.permute(*d))((x @ wq).reshape(B, Sq, Hq, Dh), 0, 2, 1, 3)
        k = (lambda x, n, axis: torch.repeat_interleave(x, n, dim=axis))(k_cache, rep, axis=1)
        v = (lambda x, n, axis: torch.repeat_interleave(x, n, dim=axis))(v_cache, rep, axis=1)
        scores = torch.einsum("bhqd,bhkd->bhqk", q, k) * (Dh ** -0.5)
        p = _softmax(scores, axis=-1)
        o = torch.einsum("bhqk,bhkd->bhqd", p, v)
        return (lambda x, *d: x.permute(*d))(o, 0, 2, 1, 3).reshape(B, Sq, Hq * Dh) @ wo

    a = _A_ref(A_x, A_k_cache, A_v_cache, A_wq, A_wo)
    b = _B_ref(B_x, B_k_cache, B_v_cache, B_wq, B_wo)
    return torch.concatenate([a, b], axis=-1)
```

```python
KNAME = "concat_heads__mha_block_cached__gqa_block_cached__near_ridge_kernel"
HEADER_COMMENT = open("concat_heads__mha_block_cached__gqa_block_cached__near_ridge.s.ref").read().split("; Override launch")[0]

class Asm:
    def __init__(self):
        self.lines = []
    def __call__(self, s=""):
        for l in s.split("\n"):
            self.lines.append(l)
    def text(self):
        return "\n".join(self.lines) + "\n"

def kernel_begin(a, name):
    a(f".globl {name}\n.p2align 8\n.type {name},@function\n{name}:")

def kernel_desc(a, name, vgpr, accum, sgpr=102):
    a(f""".section .rodata,"a"
.p2align 6
.amdhsa_kernel {name}
  .amdhsa_next_free_vgpr {vgpr}
  .amdhsa_next_free_sgpr {sgpr}
  .amdhsa_accum_offset {accum}
  .amdhsa_group_segment_fixed_size 0
  .amdhsa_kernarg_size 104
  .amdhsa_user_sgpr_count 2
  .amdhsa_user_sgpr_kernarg_segment_ptr 1
  .amdhsa_system_sgpr_workgroup_id_x 1
  .amdhsa_float_denorm_mode_32 3
.end_amdhsa_kernel
.text""")

def file_begin(a, launches):
    a(HEADER_COMMENT.rstrip("\n"))
    if len(launches) == 1 and launches[0][0] == KNAME:
        _, g, b, lds = launches[0]
        a(f"; @launch grid=({g},1,1) block=({b},1,1) lds={lds}")
    else:
        for n, g, b, lds in launches:
            a(f"; @launch kernel={n} grid=({g},1,1) block=({b},1,1) lds={lds}")
    a('.amdgcn_target "amdgcn-amd-amdhsa--gfx950"\n.text')
```

```python
import re
from collections import deque

def regs_of(op):
    op = op.strip()
    neg = op.lstrip('-')
    m = re.fullmatch(r'([vas])\[(\d+):(\d+)\]', neg)
    if m:
        return [f"{m.group(1)}{i}" for i in range(int(m.group(2)), int(m.group(3)) + 1)]
    if re.fullmatch(r'[vas]\d+', neg):
        return [neg]
    if neg in ('vcc', 'exec', 'm0', 'scc'):
        return [neg]
    return []

def R(kind, lo, n=1):
    return f"{kind}{lo}" if n == 1 else f"{kind}[{lo}:{lo+n-1}]"
def V(lo, n=1): return R('v', lo, n)
def A(lo, n=1): return R('a', lo, n)
def S(lo, n=1): return R('s', lo, n)

TRANS = ('v_exp_f32', 'v_rcp_f32', 'v_log_f32', 'v_rsq_f32', 'v_sqrt_f32')

class Ins:
    def __init__(self, op, *ops, mods="", tag=None):
        self.op = op; self.ops = [str(o) for o in ops]; self.mods = mods; self.tag = tag
        self.reads = []; self.writes = []
        o = self.ops
        rd = lambda xs: [r for x in xs for r in regs_of(x)]
        if op.startswith('v_mfma'):
            self.kind = 'mfma'; self.writes = rd(o[:1]); self.srcab = rd(o[1:3]); self.srcc = rd(o[3:4]); self.reads = self.srcab + self.srcc
        elif op.startswith('ds_read'):
            self.kind = 'dsr'; self.writes = rd(o[:1]); self.reads = rd(o[1:])
        elif op.startswith('ds_write'):
            self.kind = 'dsw'; self.reads = rd(o)
        elif op.startswith('buffer_load') and 'lds' in mods.split():
            self.kind = 'dma'; self.reads = rd(o) + ['m0']
        elif op.startswith('buffer_load') or op.startswith('global_load'):
            self.kind = 'vld'; self.writes = rd(o[:1]); self.reads = rd(o[1:])
        elif op.startswith('buffer_store') or op.startswith('global_store') or op.startswith('buffer_atomic') or op.startswith('buffer_wbl2') or op.startswith('buffer_inv'):
            self.kind = 'vst'; self.reads = rd(o)
            if op.startswith('buffer_atomic') and 'sc0' in mods.split():
                self.writes = rd(o[:1])
        elif op.startswith('v_permlane') and 'swap' in op:
            self.kind = 'valu'; self.reads = rd(o); self.writes = rd(o)
        elif op.startswith('v_'):
            self.kind = 'trans' if op in TRANS else 'valu'
            self.writes = rd(o[:1]); self.reads = rd(o[1:])
            if op.startswith('v_fmac') or op.startswith('v_dot2c'): self.reads += self.writes
        elif op in ('s_barrier', 's_nop', 's_endpgm', 's_setprio', 's_sleep', 's_waitcnt'):
            self.kind = op[2:]
        elif op.startswith('s_cbranch') or op in ('s_branch',):
            self.kind = 'branch'
        elif op.startswith('s_cmp') or op.startswith('s_bitcmp'):
            self.kind = 'salu'; self.reads = rd(o); self.writes = ['scc']
        elif op.startswith('s_load') or op in ('s_memtime', 's_memrealtime'):
            self.kind = 'smem'; self.writes = rd(o[:1]); self.reads = rd(o[1:])
        elif op == 's_setpc_b64':
            self.kind = 'branch'; self.reads = rd(o)
        elif op == 's_call_b64':
            self.kind = 'branch'; self.writes = rd(o[:1])
        elif op.startswith('s_'):
            self.kind = 'salu'; self.writes = rd(o[:1]); self.reads = rd(o[1:])
        else:
            raise ValueError(op)
    def text(self):
        s = "    " + self.op
        if self.ops: s += " " + ", ".join(self.ops)
        if self.mods: s += " " + self.mods
        return s
    def states(self):
        return int(self.ops[0]) + 1 if self.op == 's_nop' else 1

class Label:
    kind = 'label'
    def __init__(self, name): self.name = name
    def text(self): return self.name + ":"

class Wait:
    kind = 'wait'
    def __init__(self, lg=None, vm=None):
        self.lg = lg; self.vm = vm; self.nlg = None; self.nvm = None
        self.reads = []; self.writes = []
    def text(self):
        p = []
        if self.nvm is not None: p.append(f"vmcnt({min(self.nvm,63)})")
        if self.nlg is not None: p.append(f"lgkmcnt({min(self.nlg,15)})")
        if not p: return "    s_nop 0"
        return "    s_waitcnt " + " ".join(p)
    def states(self): return 1

class Loop:
    kind = 'loop'
    def __init__(self, count, body): self.count = count; self.body = body

class Seq:
    kind = 'seq'
    def __init__(self, body): self.body = body

class NoTrace:
    kind = 'notrace'
    def __init__(self, body): self.body = body

def emit_text(items, out):
    for it in items:
        if it.kind == 'loop' or it.kind == 'notrace': emit_text(it.body, out)
        elif it.kind == 'seq': pass
        else: out.append(it.text())

def flatten(items, out):
    for it in items:
        if it.kind == 'loop':
            for _ in range(it.count): flatten(it.body, out)
        elif it.kind == 'seq': flatten(it.body, out)
        elif it.kind in ('notrace', 'label'): pass
        else: out.append(it)

def bump(it, ctx):
    t = getattr(it, 'tag', None)
    if t is not None and t[1]:
        ctx['cnt'][t[0]] = ctx['cnt'].get(t[0], -1) + 1
def opinfo(it, ctx):
    t = getattr(it, 'tag', None)
    return dict(stream=None if t is None else t[0], grp=None if t is None else ctx['cnt'].get(t[0], -1), regs=set(it.writes))
def grp(ctx, stream): return ctx['cnt'].get(stream, -1)

def resolve_waits(trace):
    vq = []; lq = []; ctx = dict(bar=-1, cnt={})
    for it in trace:
        k = it.kind
        bump(it, ctx)
        if k in ('dma', 'vld', 'vst'):
            vq.append(opinfo(it, ctx))
        elif k in ('dsr', 'dsw'):
            lq.append(set(it.writes))
        elif k == 'wait':
            if it.vm is not None:
                if isinstance(it.vm, int): n = it.vm
                else:
                    n = None
                    for i in range(len(vq) - 1, -1, -1):
                        if it.vm(vq[i], ctx): n = len(vq) - 1 - i; break
                if n is not None:
                    it.nvm = n if it.nvm is None else min(it.nvm, n)
                    vq = vq[max(0, len(vq) - n):] if n else []
            if it.lg is not None:
                if isinstance(it.lg, int): n = it.lg
                else:
                    need = set(r for x in it.lg for r in regs_of(x)); n = None
                    for i in range(len(lq) - 1, -1, -1):
                        if lq[i] & need: n = len(lq) - 1 - i; break
                if n is not None:
                    it.nlg = n if it.nlg is None else min(it.nlg, n)
                    lq = lq[max(0, len(lq) - n):] if n else []
        elif k == 'waitcnt':
            t = " ".join(it.ops)
            m = re.search(r'vmcnt\((\d+)\)', t)
            if m: n = int(m.group(1)); vq = vq[max(0, len(vq) - n):] if n else []
            m = re.search(r'lgkmcnt\((\d+)\)', t)
            if m: n = int(m.group(1)); lq = lq[max(0, len(lq) - n):] if n else []

def check_trace(trace, name="", hook=None):
    errs = []
    lq = []; vq = []; sm = set(); ctx = dict(cnt={}); lastscc = ''
    hist = deque(maxlen=24)
    def err(i, msg): errs.append(f"{name}[{i}] {trace[i].text().strip()}: {msg}")
    for i, it in enumerate(trace):
        k = it.kind
        rw = set(it.reads) | set(it.writes)
        bump(it, ctx)
        if hook is not None:
            m = hook(it, ctx, vq, lq)
            if m: err(i, m)
        if k not in ('wait', 'waitcnt'):
            for q, nm in ((lq, 'lds'), (vq, 'vmem')):
                for w in q:
                    w = w['regs']
                    if w & rw: err(i, f"touches {sorted(w & rw)[:3]} with {nm} load outstanding")
            if sm & rw and k != 'smem': err(i, f"touches {sorted(sm & rw)} with smem outstanding")
        dist = 0
        for p in reversed(hist):
            pw = set(p.writes); pk = p.kind
            need = 0
            if pk == 'mfma':
                npass = 8 if '32x32' in p.op else 4
                long_ = {8: 12, 4: 8}[npass]; ovl = {8: 10, 4: 6}[npass]; war = {8: 7, 4: 3}[npass]
                if k == 'mfma':
                    if pw & set(it.srcab): need = long_
                    elif pw & set(it.srcc) and not (it.srcc == p.writes and it.op == p.op): need = ovl
                    elif pw & set(it.writes) and not (it.srcc == p.writes): need = ovl
                elif k in ('valu', 'trans', 'dsr', 'dsw', 'vld', 'vst', 'dma'):
                    if pw & rw: need = long_
                    if k in ('valu', 'trans') and set(p.srcc) & set(it.writes): need = max(need, war)
            elif pk in ('valu', 'trans'):
                vw = set(x for x in pw if x[0] in 'va' and x != 'vcc'); sw = pw - vw
                if k == 'mfma' and vw & set(it.reads): need = 2
                if pk == 'trans' and k in ('valu',) and vw & set(it.reads): need = max(need, 1)
                if it.kind == 'valu' and it.op.startswith('v_permlane') and vw & set(it.reads): need = max(need, 2)
                if it.kind == 'valu' and it.op.startswith(('v_readfirstlane', 'v_readlane')) and vw & set(it.reads): need = max(need, 1)
                if k in ('valu', 'trans') and sw & set(it.reads): need = max(need, 2)
                if k in ('dma', 'vld', 'vst') and sw & set(it.reads): need = max(need, 5)
            elif pk == 'salu':
                if 'm0' in pw and k == 'dma': need = 1
            elif pk == 'vst':
                if ('x4' in p.op or 'x3' in p.op) and k in ('valu', 'trans', 'dsr', 'vld') and set(regs_of(p.ops[0])) & set(it.writes): need = 2
            if need > dist: err(i, f"needs {need} wait states after '{p.text().strip()}', has {dist}")
            dist += p.states()
            if dist > 20: break
        hist.append(it)
        op = getattr(it, 'op', '')
        if op.startswith(('s_cselect', 's_cbranch_scc')) and not lastscc.startswith(('s_cmp', 's_bitcmp')): err(i, f"scc last written by {lastscc}")
        if op.startswith(('s_cmp', 's_bitcmp', 's_add', 's_sub', 's_and', 's_or', 's_xor', 's_lshl', 's_lshr', 's_ashr', 's_bfe', 's_min', 's_max', 's_not')): lastscc = op
        if k in ('dsr', 'dsw'): lq.append(opinfo(it, ctx))
        elif k in ('dma', 'vld', 'vst'): vq.append(opinfo(it, ctx))
        elif k == 'smem': sm |= set(it.writes)
        elif k == 'wait':
            if it.nvm is not None: n = min(it.nvm, 63); vq = vq[max(0, len(vq) - n):] if n else []
            if it.nlg is not None:
                n = min(it.nlg, 15); lq = lq[max(0, len(lq) - n):] if n else []
                if n == 0: sm = set()
        elif k == 'waitcnt':
            t = " ".join(it.ops)
            m = re.search(r'vmcnt\((\d+)\)', t)
            if m: n = int(m.group(1)); vq = vq[max(0, len(vq) - n):] if n else []
            m = re.search(r'lgkmcnt\((\d+)\)', t)
            if m:
                n = int(m.group(1)); lq = lq[max(0, len(lq) - n):] if n else []
                if n == 0: sm = set()
    return errs

def interleave(mfmas, gaps):
    out = []
    for j, m in enumerate(mfmas):
        if isinstance(m, list): out += m
        else: out.append(m)
        out += gaps[j]
    return out


def weight(it):
    if it.kind == 'trans': return 2
    if it.kind == 'label': return 0
    if getattr(it, 'op', '') == 's_nop': return it.states()
    return 1

def spread(gaps, items, g0, g1):
    n = g1 - g0 + 1
    tot = sum(weight(i) for i in items) + sum(sum(weight(i) for i in gaps[g]) for g in range(g0, g1 + 1))
    target = tot / n
    g = g0
    for it in items:
        while g < g1 and sum(weight(i) for i in gaps[g]) + weight(it) / 2.0 > target: g += 1
        gaps[g].append(it)

def cost(items):
    t = 0; mf_free = 0
    for it in items:
        if it.kind == 'label': continue
        if it.kind == 'mfma':
            t = max(t, mf_free); mf_free = t + (32 if '32x32' in it.op else 16); t += 8
        else: t += 4 * weight(it)
    return max(t, mf_free)
```

```python
import sys, argparse
from asmlib import *
from fw import *

I = Ins
NS = 5; SLOT = 17408; PIECE = 1088; TILE = 8704
L_WQ = 0; L_RING = 26112; L_QB = L_RING + NS * SLOT; L_XP = L_QB + 24576; L_END = L_XP + 26112
assert L_END == 163840
KWQ = 2176; WQRING = 12; LA = 10
PART_BYTES = 256 * 27 * 4096
STAMP_OFF = 64 * 1024 * 1024
MF = 'v_mfma_f32_32x32x16_bf16'
sW = 3; SK = 4; SV = 8; SWO = 12; SWQ = 16; SWS = 20; SX = 24
sR = 28; sLC = 29; sRET = 30
sKo = 32; sVo = 33; sWoo = 34; sWqo = 35; sRd = 36; sDm = 37; sDmK = 38; sDmW = 39; sWK = 40; sWW = 41
sB = 43; sG = 44; sBlk = 45; sT = 46; sC = 47; sT0 = 48; sT1 = 49; sT2 = 50; sEta = 51; sRot = 52; sHalf = 53; sSt = 54; sGam = 55
sST = 80
vKl0 = 1; vKl1 = 2; vVl = 3; vK0 = 4; vK1 = 5; vV = 6; vDK = 7; vDV = 8; vDW = 9
vT0 = 10; vT1 = 11; vT2 = 12; vLane = 13
vQl = 14; vL0 = 15; vL1 = 16; vMx = 17; vSt = 18
FB = 32; P = 64; NEGM = 80; SB = (96, 112); QF = 128; O = 160
def OUT(t): return A(16 * t, 16) if t < 16 else V(224 + 16 * (t - 16), 16)
vWl = 14; vX0 = 15; vX1 = 16; vQWl = 17; vQW = 18; vDQ0 = 19; vDQ1 = 20
WF = 24; XT = 40; PK = 64; ACC = 72; XR = 168
def XF(k, w):
    if k >= 28: return V(XT + 12 * (k & 1) + 4 * w, 4)
    n = 3 * k + w
    return A(4 * n, 4) if n < 64 else V(XR + 4 * (n - 64), 4)

class Cfg:
    stamps = False; kvflags = "nt"; wflags = ""; stflags = ""; thr = 10.0; dump = None

def fixup(seq):
    out = []
    for it in seq:
        if it.kind == 'dma' and out and out[-1].kind == 'salu' and 'm0' in out[-1].writes:
            m = out[-1]
            p = out[-2] if len(out) > 1 else None
            if p is not None and p.kind in ('valu', 'trans', 'dsr', 'dsw', 'mfma', 'salu') and not (set(p.writes) & set(m.reads)) and 'm0' not in p.writes and not (p.kind == 'salu' and ('scc' in p.writes or p.op.startswith('s_cselect'))):
                out[-2], out[-1] = m, p
            else:
                out.append(I('s_nop', 0))
        out.append(it)
    return out

def step_type(s):
    s %= 26
    return 'K' if s == 0 else 'KV' if s <= 15 else 'V' if s == 16 else 'W'

def dma_group(ty, cfg):
    o = []; first = [True]
    def ld(m0src, m0add, voff, srd, soff, off, fl):
        if m0add == 0: o.append(I('s_mov_b32', 'm0', S(m0src)))
        elif m0add > 0: o.append(I('s_add_u32', 'm0', S(m0src), m0add))
        else: o.append(I('s_sub_u32', 'm0', S(m0src), -m0add))
        o.append(I('buffer_load_dwordx4', V(voff), S(srd, 4), S(soff), mods=f"offen {'offset:%d ' % off if off else ''}{fl} lds", tag=('main', first[0])))
        first[0] = False
    if 'K' in ty:
        ld(sDmK, 0, vDK, SK, sKo, 0, cfg.kvflags); ld(sDmK, PIECE - 1024, vDK, SK, sKo, 1024, cfg.kvflags)
        o.append(I('s_add_u32', S(sKo), S(sKo), 8192))
    if 'V' in ty:
        ld(sDmK, TILE, vDV, SV, sVo, 0, cfg.kvflags); ld(sDmK, TILE + PIECE - 256, vDV, SV, sVo, 256, cfg.kvflags)
        o.append(I('s_add_u32', S(sVo), S(sVo), 8192))
    if ty == 'W':
        for k in range(4): ld(sDmW, k * (PIECE - 1152), vDW, SWO, sWoo, 1152 * k, cfg.wflags)
        o.append(I('s_add_u32', S(sWoo), S(sWoo), 128))
    return o

def slot_advance(awave):
    o = [I('s_add_u32', S(sDmK), S(sRd), S(sWK)), I('s_add_u32', S(sDmW), S(sRd), S(sWW)),
         I('s_add_u32', S(sRd), S(sRd), SLOT), I('s_cmp_eq_u32', S(sRd), L_RING + NS * SLOT), I('s_cselect_b32', S(sRd), L_RING, S(sRd))]
    return o
def addr_update(nextty):
    o = []
    if 'K' in nextty: o += [I('v_add_u32', V(vK0), S(sRd), V(vKl0)), I('v_add_u32', V(vK1), S(sRd), V(vKl1))]
    if nextty != 'K': o += [I('v_add_u32', V(vV), S(sRd), V(vVl))]
    return o

def main_wait(lg=0, wq_ahead=None):
    def pred(op, ctx):
        if op['stream'] == 'main' and op['grp'] <= grp(ctx, 'mbar') + 1: return True
        if wq_ahead is not None and op['stream'] == 'wq' and op['grp'] <= grp(ctx, 'wqr') + wq_ahead: return True
        return False
    return Wait(lg=lg, vm=pred)
def mbar(): return I('s_barrier', tag=('mbar', True))

def head_setup_kv(rreg_plus):
    return [I('s_add_u32', S(sT0), S(sR), S(sB)), I('s_add_u32', S(sT0), S(sT0), rreg_plus), I('s_and_b32', S(sT0), S(sT0), 3),
            I('s_lshl_b32', S(sT1), S(sG), 2), I('s_add_u32', S(sT0), S(sT0), S(sT1)),
            I('s_lshl_b32', S(sT1), S(sB), 5), I('s_add_u32', S(sT0), S(sT0), S(sT1)),
            I('s_lshl_b32', S(sKo), S(sT0), 17), I('s_mov_b32', S(sVo), S(sKo))]
def head_setup_wo():
    return [I('s_add_u32', S(sT0), S(sR), S(sB)), I('s_and_b32', S(sT0), S(sT0), 3),
            I('s_lshl_b32', S(sT1), S(sG), 2), I('s_add_u32', S(sT0), S(sT0), S(sT1)), I('s_mul_i32', S(sWoo), S(sT0), 147456)]
def extra_salu(s):
    if s == 11: return head_setup_wo()
    if s == 16: return head_setup_kv(1)
    return []

def fb(n): return FB + 4 * (n % 8)
def rd_K(i): return [I('ds_read_b128', V(fb(i), 4), V(vK0 if i % 2 == 0 else vK1), mods=f"offset:{64 * (i >> 1)}")]
def rd_V(i, n):
    tp, dt = i // 4, i % 4
    return [I('ds_read_b64_tr_b16', V(fb(n) + 2 * u, 2), V(vV), mods=f"offset:{TILE + (2 * tp + u) * 256 + dt * 64}") for u in range(2)]
def rd_W(n):
    u, t = n // 8, n % 8
    return [I('ds_read_b64_tr_b16', V(fb(n) + 2 * v, 2), V(vV), mods=f"offset:{v * TILE + t * 128 + u * 64}") for v in range(2)]
def rd_Q(i): return [I('ds_read_b128', V(QF + 4 * i, 4), V(vQl), mods=f"offset:{1024 * i}")]
def rd_first(ty, i):
    if ty == 'K': return rd_K(i) + rd_Q(i)
    if ty == 'KV': return rd_K(i)
    if ty == 'V': return rd_V(i, i)
    return rd_W(i)
def FBr(n): return V(fb(n), 4)

def mf_qk(g, i, first=False):
    s = V(SB[g % 2], 16)
    c = s if i else ('0' if first else V(NEGM, 16))
    return I(MF, s, FBr(i), V(QF + 4 * i, 4), c)
def mf_pv(i, n, zero=False):
    tp, dt = i // 4, i % 4
    d = V(O + 16 * dt, 16)
    return I(MF, d, FBr(n), V(P + 4 * tp, 4), '0' if (zero and tp == 0) else d)
def mf_out(p, n):
    u, t = n // 8, n % 8
    d = OUT(2 * p + u)
    return I(MF, d, FBr(n), V(QF + 4 * t, 4), d)

def softmax_lists(g):
    s = SB[g % 2]
    E = [I('v_exp_f32', V(s + i), V(s + i)) for i in range(16)]
    C = [I('v_cvt_pk_bf16_f32', V(P + k), V(s + 2 * k), V(s + 2 * k + 1)) for k in range(8)]
    Ad = [I('v_add_f32', V(vL0 + (i & 1)), V(vL0 + (i & 1)), V(s + i)) for i in range(16)]
    return E, C, Ad
def max_list(g):
    s = SB[g % 2]
    o = [I('v_max3_f32', V(vMx), V(s), V(s + 1), V(s + 2))]
    for i in range(3, 15, 2): o.append(I('v_max3_f32', V(vMx), V(vMx), V(s + i), V(s + i + 1)))
    o.append(I('v_max_f32', V(vMx), V(vMx), V(s + 15)))
    return o

def tail_gaps(gaps, L, s, cfg, nextty, dmaty, do_bar=True):
    b = L - 6
    if do_bar:
        pre = slot_advance(True) + addr_update(nextty)
        spread(gaps, pre, max(b - 2, 0), b - 1)
        gaps[b] = gaps[b] + [main_wait(0), mbar()]
        for i in range(8):
            gaps[b + max(0, i - 2)] += rd_first(nextty, i)
    d = dma_group(dmaty, cfg) if dmaty else []
    return d + extra_salu(s + 1)

rare_sites = []
def att_step(s, cfg, name):
    g = s
    nextty = step_type(s + 1)
    mf = [mf_qk(g, i) for i in range(8)] + [mf_pv(i, 8 + i, zero=(s == 1)) for i in range(8)]
    gaps = [[] for _ in range(16)]
    for i in range(8): gaps[i] += rd_V(i, 8 + i)
    E, C, Ad = softmax_lists(g - 1)
    d = tail_gaps(gaps, 16, s, cfg, nextty, step_type(s + 5))
    p1 = E[0:4] + [C[0]] + E[4:6] + [C[1]] + E[6:8] + [C[2]] + E[8:10] + [C[3]] + Ad[0:2] + E[10:12] + [C[4]] + Ad[2:4] + E[12:14] + [C[5]]
    spread(gaps, p1, 0, 6)
    p2 = E[14:16] + Ad[4:5] + [C[6], C[7]] + Ad[5:10]
    spread(gaps, p2, 7, 9)
    mx = max_list(g)
    rest = []
    q1 = Ad[10:16] + mx + [I('v_cmp_lt_f32', 'vcc', S(sT), V(vMx))]
    while q1 or d:
        if d: rest.append(d.pop(0))
        if q1: rest.append(q1.pop(0))
    spread(gaps, rest, 10, 15)
    mf[0] = [Wait(lg=[FBr(0), FBr(1), FBr(2), FBr(3)]), mf[0]]
    mf[4] = [Wait(lg=[FBr(4), FBr(5), FBr(6), FBr(7)]), mf[4]]
    mf[8] = [Wait(lg=[FBr(8), FBr(9), FBr(10)]), mf[8]]
    seq = fixup(interleave(mf, gaps))
    seq += [I('s_cbranch_vccnz', f"L_rare_{name}"), Label(f"L_back_{name}")]
    rare_sites.append((name, g % 2))
    return seq

def att_step0(cfg):
    mf = [mf_qk(0, i, first=True) for i in range(8)]
    gaps = [[] for _ in range(8)]
    d = tail_gaps(gaps, 8, 0, cfg, 'KV', step_type(5))
    spread(gaps, d, 2, 7)
    q = [V(QF + 4 * i, 4) for i in range(8)]
    mf[0] = [Wait(lg=[FBr(0), FBr(1), FBr(2)] + q[:3]), mf[0]]
    seq = fixup(interleave(mf, gaps))
    s = SB[0]
    seq += [I('v_mov_b32', V(vL0), 0), I('v_mov_b32', V(vL1), 0), I('s_nop', 9)]
    seq += max_list(0)
    seq += [I('v_mov_b32', V(vT0), V(vMx)), I('s_nop', 1), I('v_permlane32_swap_b32', V(vT0), V(vMx)), I('v_max_f32', V(vMx), V(vMx), V(vT0))]
    seq += [I('v_sub_f32', V(NEGM + i), 0, V(vMx)) for i in range(16)]
    seq += [I('v_sub_f32', V(s + i), V(s + i), V(vMx)) for i in range(16)]
    return seq

def att_step16(cfg):
    mf = [mf_pv(i, i) for i in range(8)]
    gaps = [[] for _ in range(8)]
    E, C, Ad = softmax_lists(15)
    pre = E[0:4] + [C[0]] + E[4:6] + [C[1]] + E[6:8] + [C[2]] + E[8:10] + [C[3]] + Ad[0:4]
    d = tail_gaps(gaps, 8, 16, cfg, 'W', step_type(21))
    spread(gaps, E[10:12] + [C[4]] + E[12:14] + [C[5]] + E[14:16] + Ad[4:5] + [C[6], C[7]] + Ad[5:7], 0, 3)
    red = Ad[7:16] + [I('v_add_f32', V(vL0), V(vL0), V(vL1)), I('v_mov_b32', V(vT0), V(vL0)), I('s_nop', 1),
                      I('v_permlane32_swap_b32', V(vT0), V(vL0)), I('v_add_f32', V(vL0), V(vL0), V(vT0)), I('v_rcp_f32', V(vL0), V(vL0))]
    rest = []
    while red or d:
        if d: rest.append(d.pop(0))
        if red: rest.append(red.pop(0))
    spread(gaps, rest, 4, 7)
    mf[0] = [Wait(lg=[FBr(0), FBr(1), FBr(2)]), mf[0]]
    seq = pre + fixup(interleave(mf, gaps))
    seq += [I('s_nop', 1)]
    for dt in range(4):
        for i in range(16): seq.append(I('v_mul_f32', V(O + 16 * dt + i), V(O + 16 * dt + i), V(vL0)))
        for k in range(8): seq.append(I('v_cvt_pk_bf16_f32', V(QF + 8 * dt + k), V(O + 16 * dt + 2 * k), V(O + 16 * dt + 2 * k + 1)))
    seq += [I('s_nop', 0)]
    return seq

def store_tile(t, q0, cfg, buf):
    tmp = O + 32 * buf; pk = tmp + 16
    o = []
    for k in range(8):
        if t < 16:
            o += [I('v_accvgpr_read_b32', V(tmp + 2 * k), A(16 * t + 2 * k)), I('v_accvgpr_read_b32', V(tmp + 2 * k + 1), A(16 * t + 2 * k + 1))]
            o += [I('v_cvt_pk_bf16_f32', V(pk + k), V(tmp + 2 * k), V(tmp + 2 * k + 1))]
        else:
            b = 224 + 16 * (t - 16)
            o += [I('v_cvt_pk_bf16_f32', V(pk + k), V(b + 2 * k), V(b + 2 * k + 1))]
        if k % 4 == 3:
            q = q0 + k // 4
            o.append(I('buffer_store_dwordx4', V(pk + k - 3, 4), V(vSt), S(SWS, 4), S(sSt), mods=f"offen {'offset:%d ' % (1024 * q) if q else ''}{cfg.stflags}"))
    return o

def out_step(p, cfg, last):
    s = 17 + p
    mf = [mf_out(p, n) for n in range(16)]
    gaps = [[] for _ in range(16)]
    for i in range(8): gaps[i] += rd_W(8 + i)
    final = last and p == 8
    nextty = step_type(s + 1)
    dmaty = step_type(s + 5)
    if last and s + 5 >= 26: dmaty = None
    d = tail_gaps(gaps, 16, s, cfg, nextty, dmaty, do_bar=not final)
    if last:
        if p > 0:
            spread(gaps, store_tile(2 * p - 1, 2, cfg, 1) + [I('s_add_u32', S(sSt), S(sSt), 32768)], 2, 7)
        st = ([I('s_nop', 3)] if final else []) + store_tile(2 * p, 0, cfg, 0)
        rest = []
        while st or d:
            if d: rest.append(d.pop(0))
            if st: rest.append(st.pop(0))
            if st: rest.append(st.pop(0))
        spread(gaps, rest, 10, 15)
    else:
        spread(gaps, d, 10, 15)
    mf[0] = [Wait(lg=[FBr(0), FBr(1), FBr(2), FBr(3)]), mf[0]]
    mf[4] = [Wait(lg=[FBr(4), FBr(5), FBr(6), FBr(7)]), mf[4]]
    mf[8] = [Wait(lg=[FBr(8), FBr(9), FBr(10)] if not final else [FBr(i) for i in range(8, 12)]), mf[8]]
    if final: mf[12] = [Wait(lg=0), mf[12]]
    seq = fixup(interleave(mf, gaps))
    if final:
        seq += [I('s_nop', 11)] + store_tile(17, 2, cfg, 1)
    return seq

def rare_code():
    o = []
    for name, par in rare_sites:
        o += [Label(f"L_rare_{name}"), I('s_call_b64', S(sRET, 2), f"L_rare_sub{par}"), I('s_branch', f"L_back_{name}")]
    for par in range(2):
        o += [Label(f"L_rare_sub{par}")] + rare_body(par) + [I('s_setpc_b64', S(sRET, 2))]
    return o
def rare_body(par):
    s = SB[par]
    o = [I('s_nop', 11), I('v_mov_b32', V(vT0), V(vMx)), I('s_nop', 1), I('v_permlane32_swap_b32', V(vT0), V(vMx)),
         I('v_max3_f32', V(vMx), V(vMx), V(vT0), 0), I('v_sub_f32', V(vT0), 0, V(vMx)), I('v_exp_f32', V(vT0), V(vT0))]
    o += [I('v_sub_f32', V(s + i), V(s + i), V(vMx)) for i in range(16)]
    o += [I('v_sub_f32', V(NEGM + i), V(NEGM + i), V(vMx)) for i in range(16)]
    o += [I('v_mul_f32', V(vL0), V(vL0), V(vT0)), I('v_mul_f32', V(vL1), V(vL1), V(vT0))]
    o += [I('v_mul_f32', V(O + i), V(O + i), V(vT0)) for i in range(64)]
    o += [I('s_nop', 1)]
    return o

def stamp(cfg, n):
    return [I('s_memrealtime', S(sST + 2 * n, 2))] if cfg.stamps else []
def stamp_flush(cfg):
    if not cfg.stamps: return []
    o = [I('s_memrealtime', S(sST + 14, 2)), I('s_waitcnt', 'vmcnt(0) lgkmcnt(0)'),
         I('s_lshl_b32', S(sT0), S(2), 2), I('s_add_u32', S(sT0), S(sT0), S(sW)), I('s_lshl_b32', S(sT0), S(sT0), 6),
         I('s_add_u32', S(sT0), S(sT0), STAMP_OFF), I('s_mov_b32', S(SWS + 2), STAMP_OFF + 65536), I('v_mov_b32', V(vT0), 0), I('s_mov_b64', 'exec', 1)]
    for q in range(4):
        o += [I('v_mov_b32', V(32 + 4 * q + i), S(sST + 4 * q + i)) for i in range(4)]
        o += [I('buffer_store_dwordx4', V(32 + 4 * q, 4), V(vT0), S(SWS, 4), S(sT0), mods=f"offen offset:{16 * q}")]
    return o

def initial_dma(cfg):
    o = head_setup_kv(0)
    for st in range(4):
        o += [I('s_add_u32', S(sDmK), S(sWK), L_RING + st * SLOT)] + dma_group(step_type(st), cfg)
    o += [I('s_mov_b32', S(sRd), L_RING + 4 * SLOT)]
    return fixup(o)

def a_program(cfg):
    pro = []
    w = sW
    pro += [I('v_lshlrev_b32', V(vT0), 4, V(vLane)), I('s_lshl_b32', S(sT0), S(w), 13), I('s_add_u32', S(sT0), S(sT0), L_QB),
            I('v_add_u32', V(vQl), S(sT0), V(vT0)), I('v_mov_b32', V(vSt), V(vT0)),
            I('s_mul_i32', S(sT0), S(sGam), 27), I('s_mul_i32', S(sT1), S(w), 9), I('s_add_u32', S(sT0), S(sT0), S(sT1)),
            I('s_lshl_b32', S(sT0), S(sT0), 3), I('s_add_u32', S(sT0), S(sT0), S(sG)), I('s_lshl_b32', S(sSt), S(sT0), 12)]
    pro += [I('v_accvgpr_write_b32', A(i), 0) for i in range(256)] + [I('v_mov_b32', V(224 + i), 0) for i in range(32)]
    pro += [I('s_waitcnt', 'vmcnt(0)'), I('s_barrier'), I('s_barrier')]
    pro += initial_dma(cfg)
    pro += slot_advance(True) + addr_update('K') + [main_wait(0), mbar()] + stamp(cfg, 1)
    for i in range(8): pro += rd_first('K', i)
    pro += fixup(dma_group(step_type(4), cfg))
    s0 = att_step0(cfg); s1 = att_step(1, cfg, "s1")
    lp = [Label("L_aloop")] + att_step(2, cfg, "s2") + att_step(3, cfg, "s3") + [I('s_sub_u32', S(sLC), S(sLC), 1), I('s_cmp_lg_u32', S(sLC), 0), I('s_cbranch_scc1', 'L_aloop')]
    return pro, s0, s1, lp

def build_a(cfg):
    pro, s0, s1, lp = a_program(cfg)
    att = s0 + s1 + [I('s_mov_b32', S(sLC), 4), Loop(4, lp)]
    for s in range(10, 16): att += att_step(s, cfg, f"s{s}")
    att += att_step16(cfg)
    outn = []; outl = []
    for p in range(9): outn += out_step(p, cfg, False)
    for p in range(9): outl += out_step(p, cfg, True)
    chk = [I('s_cmp_eq_u32', S(sR), 3), I('s_cbranch_scc1', 'L_alast')]
    nxt = [I('s_add_u32', S(sR), S(sR), 1)]
    rs = [I('s_cmp_eq_u32', S(sR), 1), I('s_cbranch_scc0', 'L_nost2')] + stamp(cfg, 2) + [Label('L_nost2')] if cfg.stamps else []
    prog = pro + [Label("L_around"), Loop(3, att + chk + outn + nxt + [NoTrace(rs + [I('s_branch', 'L_around')])]), Seq(att + chk), Label("L_alast")] + stamp(cfg, 3) + outl + stamp(cfg, 4)
    prog += stamp_flush(cfg) + [I('s_endpgm')]
    prog += [NoTrace(rare_code())]
    return prog

def wf(k, u): return WF + 8 * (k & 1) + 4 * u
def rd_wq(k):
    o = []
    for u in range(2):
        for v in range(2):
            o.append(I('ds_read_b64_tr_b16', V(wf(k, u) + 2 * v, 2), V(vWl), mods=f"offset:{(k % WQRING) * KWQ + v * 256 + u * 64}", tag=('wqr', u == 0 and v == 0)))
    return o
def rd_xp(k):
    if k < 28: return []
    s = k - 28
    return [I('ds_read_b128', XF(k, w), V(vX0 if s % 2 == 0 else vX1), mods=f"offset:{w * TILE + 64 * (s >> 1)}") for w in range(3)]
def next_half_salu():
    return [I('s_add_u32', S(sEta), S(sEta), 1), I('s_lshr_b32', S(sT0), S(sEta), 1), I('s_add_u32', S(sT0), S(sT0), S(sB)), I('s_and_b32', S(sT0), S(sT0), 3),
            I('s_lshl_b32', S(sT1), S(sG), 2), I('s_add_u32', S(sT0), S(sT0), S(sT1)), I('s_lshl_b32', S(sT0), S(sT0), 8),
            I('s_xor_b32', S(sT1), S(sEta), S(sRot)), I('s_and_b32', S(sT1), S(sT1), 1), I('s_lshl_b32', S(sT1), S(sT1), 7), I('s_add_u32', S(sWqo), S(sT0), S(sT1)),
            I('s_cmp_ge_u32', S(sEta), 8), I('s_cselect_b32', S(SWQ + 2), 0, S(SWQ + 2))]
def dma_wq(k, cfg):
    o = []
    if k % 36 == 0: o += next_half_salu()
    for i in range(2):
        o += [I('s_mov_b32', 'm0', L_WQ + (k % WQRING) * KWQ + i * PIECE),
              I('buffer_load_dwordx4', V(vDQ0 + i), S(SWQ, 4), S(sWqo), mods=f"offen {cfg.wflags} lds", tag=('wq', i == 0))]
    o += [I('s_add_u32', S(sWqo), S(sWqo), 131072)]
    return o
def q_head(s, cfg, wq_ahead, lg=None):
    if s is None:
        if wq_ahead is None: return [], []
        return [Wait(vm=lambda op, ctx: op['stream'] == 'wq' and op['grp'] <= grp(ctx, 'wqr') + wq_ahead)], []
    return slot_advance(False) + [main_wait(lg, wq_ahead), mbar()], dma_group(step_type(s + 4), cfg) + extra_salu(s)
def q_interval(k0, s, cfg):
    head, d = q_head(s, cfg, 3, lg=(0 if s in (0, 13) else None))
    mf = []; gaps = [[] for _ in range(18)]
    for j in range(3):
        k = k0 + j
        for u in range(2):
            for w in range(3):
                acc = V(ACC + 16 * (3 * u + w), 16)
                m = I(MF, acc, V(wf(k, u), 4), XF(k, w), acc if k else '0')
                if u == 0 and w == 0: m = [Wait(lg=[V(wf(k, 0), 8)] + ([XF(k, x) for x in range(3)] if k >= 28 else [])), m]
                mf.append(m)
        spread(gaps, rd_wq((k + 1) % 36) + rd_xp((k + 1) % 36), 6 * j, 6 * j + 3)
    ld = []
    for j in range(3): ld += dma_wq(k0 + LA + j, cfg)
    spread(gaps, ld + d, 0, 17)
    return head + fixup(interleave(mf, gaps))
def q_epilogue(s, cfg):
    head, d = q_head(s, cfg, None)
    o = head + fixup(d) + [I('v_add_u32', V(vQW), S(sHalf), V(vQWl)), I('s_xor_b32', S(sHalf), S(sHalf), 4096), I('s_nop', 9)]
    for u in range(2):
        for w in range(3):
            a = ACC + 16 * (3 * u + w)
            pk = PK
            o += [I('v_mul_f32', V(a + i), S(sC), V(a + i)) for i in range(16)]
            for e in range(2):
                o += [I('v_cvt_pk_bf16_f32', V(pk + 4 * e + k), V(a + 8 * e + 2 * k), V(a + 8 * e + 2 * k + 1)) for k in range(4)]
                o += [I('ds_write_b128', V(vQW), V(pk + 4 * e, 4), mods=f"offset:{w * 8192 + (2 * u + e) * 1024}")]
    return o

def build_q(cfg):
    pro = []
    pro += [I('v_and_b32', V(vT0), 3, V(vLane)),
            I('v_and_b32', V(vT1), 1, V(vT0)), I('v_lshlrev_b32', V(vT1), 1, V(vT1)), I('v_lshrrev_b32', V(vT0), 1, V(vT0)), I('v_or_b32', V(vT0), V(vT0), V(vT1)),
            I('v_lshlrev_b32', V(vWl), 3, V(vT0)),
            I('v_bfe_u32', V(vT0), V(vLane), 4, 1), I('v_lshl_add_u32', V(vWl), V(vT0), 5, V(vWl)),
            I('v_bfe_u32', V(vT0), V(vLane), 5, 1), I('v_lshl_add_u32', V(vWl), V(vT0), 9, V(vWl)),
            I('v_bfe_u32', V(vT0), V(vLane), 3, 1), I('v_lshl_add_u32', V(vWl), V(vT0), 7, V(vWl)),
            I('v_bfe_u32', V(vT0), V(vLane), 2, 1), I('v_mul_u32_u24', V(vT0), PIECE, V(vT0)), I('v_add_u32', V(vWl), V(vWl), V(vT0)),
            I('v_lshlrev_b32', V(vT0), 4, V(vLane)), I('v_add_u32', V(vQWl), L_QB, V(vT0)),
            I('v_lshrrev_b32', V(vT0), 3, V(vLane)), I('v_lshlrev_b32', V(vT0), 14, V(vT0)), I('v_and_b32', V(vT1), 7, V(vLane)),
            I('v_lshl_add_u32', V(vDQ0), V(vT1), 4, V(vT0)), I('v_add_u32', V(vDQ1), 8192, V(vDQ0)),
            I('s_lshr_b32', S(sRot), S(sB), 2), I('s_and_b32', S(sRot), S(sRot), 1), I('s_lshl_b32', S(sHalf), S(sRot), 12), I('s_mov_b32', S(sEta), -1)]
    assert L_WQ == 0
    ld = []
    for k in range(LA): ld += dma_wq(k, cfg)
    pro += fixup(ld)
    pro += [I('s_waitcnt', f'vmcnt({2 * LA})'), I('s_barrier')]
    for D in range(4):
        pro += [I('v_add_u32', V(vX0), L_RING + 3 * D * TILE, V(vKl0)), I('v_add_u32', V(vX1), L_RING + 3 * D * TILE, V(vKl1))]
        for s in range(8):
            k = 8 * D + s
            if k >= 28: continue
            for w in range(3):
                pro.append(I('ds_read_b128', XF(k, w), V(vX0 if s % 2 == 0 else vX1), mods=f"offset:{w * TILE + 64 * (s >> 1)}"))
        pro += [I('s_waitcnt', 'lgkmcnt(0)')]
    pro += [I('s_barrier')]
    pro += [I('v_add_u32', V(vX0), L_XP, V(vKl0)), I('v_add_u32', V(vX1), L_XP, V(vKl1))]
    pro += initial_dma(cfg)
    pro += [Wait(vm=lambda op, ctx: op['stream'] == 'wq' and op['grp'] <= 0)] + rd_wq(0)
    half = [Label("L_qpro")]
    for j in range(12): half += q_interval(3 * j, None, cfg)
    half += q_epilogue(None, cfg) + [I('s_sub_u32', S(sLC), S(sLC), 1), I('s_cmp_lg_u32', S(sLC), 0), I('s_cbranch_scc1', 'L_qpro')]
    pro += [I('s_mov_b32', S(sLC), 2), Loop(2, half)] + stamp(cfg, 1)
    rnd = [Label("L_qround")]
    for s in range(12): rnd += q_interval(3 * s, s, cfg)
    rnd += q_epilogue(12, cfg)
    for s in range(13, 25): rnd += q_interval(3 * (s - 13), s, cfg)
    rnd += q_epilogue(25, cfg)
    rnd += [I('s_add_u32', S(sR), S(sR), 1), I('s_cmp_lt_u32', S(sR), 3), I('s_cbranch_scc1', 'L_qround')]
    last = []
    for s in range(26):
        head = slot_advance(False) + [main_wait(0 if s == 0 else None), mbar()]
        last += head
        if s + 4 < 26: last += fixup(dma_group(step_type(s + 4), cfg) + extra_salu(s))
    prog = pro + [Loop(3, rnd)] + stamp(cfg, 3) + last + stamp_flush(cfg) + [I('s_endpgm')]
    return prog

def common_prologue(cfg):
    o = [I('s_cmp_ge_u32', S(2), 256), I('s_cbranch_scc1', 'L_exit'),
         I('s_load_dwordx16', S(56, 16), S(0, 2), 0), I('s_load_dwordx4', S(72, 4), S(0, 2), 64), I('s_load_dwordx2', S(SWS, 2), S(0, 2), 96)]
    o += stamp(cfg, 0)
    o += [I('v_lshrrev_b32', V(vT0), 6, V(0)), I('v_and_b32', V(vLane), 63, V(0)), I('v_readfirstlane_b32', S(sW), V(vT0)),
          I('s_and_b32', S(sT0), S(2), 7), I('s_lshr_b32', S(sBlk), S(sT0), 2), I('s_and_b32', S(sT0), S(sT0), 3),
          I('s_lshr_b32', S(sT1), S(2), 3), I('s_lshr_b32', S(sB), S(sT1), 1), I('s_and_b32', S(sT1), S(sT1), 1),
          I('s_lshl_b32', S(sG), S(sT0), 1), I('s_add_u32', S(sG), S(sG), S(sT1)),
          I('s_lshl_b32', S(sGam), S(sBlk), 4), I('s_add_u32', S(sGam), S(sGam), S(sB)),
          I('s_mov_b32', S(sR), 0), I('s_mov_b32', S(sT), hex(f2u(cfg.thr))), I('s_mov_b32', S(sC), hex(f2u(1.4426950408889634 / 128 ** 0.5))),
          I('s_mul_i32', S(sWK), S(sW), 2 * PIECE), I('s_mul_i32', S(sWW), S(sW), 4 * PIECE)]
    o += [I('v_bfe_u32', V(vT0), V(vLane), 2, 3), I('v_mul_u32_u24', V(vKl0), PIECE, V(vT0)),
          I('v_and_b32', V(vT0), 3, V(vLane)), I('v_lshl_add_u32', V(vKl0), V(vT0), 8, V(vKl0)),
          I('v_lshrrev_b32', V(vT1), 5, V(vLane)), I('v_xor_b32', V(vT0), V(vT0), V(vT1)),
          I('v_xor_b32', V(vT1), 2, V(vT0)),
          I('v_lshl_add_u32', V(vKl1), V(vT1), 4, V(vKl0)), I('v_lshl_add_u32', V(vKl0), V(vT0), 4, V(vKl0)),
          I('v_lshrrev_b32', V(vT0), 5, V(vLane)), I('v_bfe_u32', V(vT1), V(vLane), 2, 2), I('v_lshl_add_u32', V(vT0), V(vT0), 2, V(vT1)),
          I('v_mul_u32_u24', V(vVl), PIECE, V(vT0)), I('v_bfe_u32', V(vT0), V(vLane), 4, 1), I('v_lshl_add_u32', V(vVl), V(vT0), 5, V(vVl)),
          I('v_and_b32', V(vT0), 3, V(vLane)), I('v_lshl_add_u32', V(vVl), V(vT0), 3, V(vVl)),
          I('v_lshrrev_b32', V(vT0), 4, V(vLane)), I('v_and_b32', V(vT1), 15, V(vLane)),
          I('v_lshlrev_b32', V(vDV), 11, V(vT0)), I('v_lshl_add_u32', V(vDV), V(vT1), 4, V(vDV)),
          I('v_xor_b32', V(vT1), V(vT1), V(vT0)), I('v_lshlrev_b32', V(vT1), 4, V(vT1)),
          I('v_lshl_add_u32', V(vDK), V(vT0), 8, V(vT1)),
          I('v_mul_u32_u24', V(vT2), 1152, V(vT0)), I('v_add_u32', V(vT2), V(vT2), V(vT1)),
          I('s_lshl_b32', S(sT0), S(sW), 11), I('v_add_u32', V(vDK), S(sT0), V(vDK)),
          I('s_lshl_b32', S(sT0), S(sW), 9), I('v_add_u32', V(vDV), S(sT0), V(vDV)),
          I('s_mul_i32', S(sT0), S(sW), 8 * 1152), I('v_add_u32', V(vT2), S(sT0), V(vT2)),
          I('v_lshrrev_b32', V(vT0), 3, V(vLane)), I('v_mul_u32_u24', V(vDW), 18432, V(vT0)), I('v_and_b32', V(vT0), 7, V(vLane)),
          I('v_lshl_add_u32', V(vDW), V(vT0), 4, V(vDW)), I('s_mul_i32', S(sT0), S(sW), 4 * 1152), I('v_add_u32', V(vDW), S(sT0), V(vDW))]
    o += [I('s_waitcnt', 'lgkmcnt(0)'), I('s_cmp_eq_u32', S(sBlk), 0)]
    for srd, ia, ib, size in ((SX, 56, 66, 1769472), (SK, 58, 68, 67108864), (SV, 60, 70, 67108864), (SWQ, 62, 72, 4718592), (SWO, 64, 74, 4718592)):
        o += [I('s_cselect_b32', S(srd), S(ia), S(ib)), I('s_cselect_b32', S(srd + 1), S(ia + 1), S(ib + 1)),
              I('s_mov_b32', S(srd + 2), size), I('s_mov_b32', S(srd + 3), '0x20000')]
    o += [I('s_mov_b32', S(SWS + 2), PART_BYTES), I('s_mov_b32', S(SWS + 3), '0x20000')]
    o += [I('s_mul_i32', S(sT2), S(sB), 110592)]
    ld = []
    for D in range(5):
        for w in range(3):
            col = 256 * D if D < 4 else 896
            base = L_RING + (3 * D + w) * TILE if D < 4 else L_XP + w * TILE
            for i in range(2):
                ld += [I('s_add_u32', 'm0', S(sWK), base + i * PIECE), I('s_add_u32', S(sT1), S(sT2), (32 * w + 4 * i) * 1152 + col),
                       I('buffer_load_dwordx4', V(vT2), S(SX, 4), S(sT1), mods=f"offen {cfg.wflags} lds")]
    o += ld
    return o

import struct
def f2u(x): return struct.unpack('<I', struct.pack('<f', x))[0]

def hook(it, ctx, vq, lq):
    t = getattr(it, 'tag', None)
    if t is None: return None
    if t[0] == 'mbar':
        if any(o['stream'] == 'main' and o['grp'] <= grp(ctx, 'mbar') for o in vq): return "main loads outstanding at barrier"
    if t[0] == 'wqr':
        if any(o['stream'] == 'wq' and o['grp'] <= grp(ctx, 'wqr') for o in vq): return "wq load outstanding at read"
    if t[0] == 'wq':
        g = grp(ctx, 'wq') - WQRING
        if grp(ctx, 'wqr') < g or any(o['stream'] == 'wqr' and o['grp'] <= g for o in lq): return "wq ring overwrite before read done"
    if t[0] == 'main' and t[1]:
        if grp(ctx, 'main') - NS + 1 > grp(ctx, 'mbar') and grp(ctx, 'main') >= NS: return "main ring overwrite too early"
    return None

def build_reduce(cfg):
    o = [I('s_cmp_ge_u32', S(2), 432), I('s_cbranch_scc1', 'L_rexit'),
         I('s_load_dwordx2', S(4, 2), S(0, 2), 96), I('s_load_dwordx2', S(8, 2), S(0, 2), 80),
         I('v_lshrrev_b32', V(1), 6, V(0)), I('v_and_b32', V(2), 63, V(0)), I('v_readfirstlane_b32', S(3), V(1)),
         I('s_lshl_b32', S(12), S(2), 2), I('s_add_u32', S(12), S(12), S(3)),
         I('s_and_b32', S(13), S(12), 1), I('s_lshr_b32', S(12), S(12), 1),
         I('s_lshl_b32', S(14), S(12), 15), I('s_lshl_b32', S(15), S(13), 11), I('s_add_u32', S(14), S(14), S(15)),
         I('v_lshlrev_b32', V(3), 4, V(2)),
         I('s_mov_b32', S(6), PART_BYTES), I('s_mov_b32', S(7), '0x20000'), I('s_mov_b32', S(10), 16 * 96 * 1152 * 2), I('s_mov_b32', S(11), '0x20000'),
         I('s_waitcnt', 'lgkmcnt(0)')]
    for g in range(8):
        for q in range(2):
            o.append(I('buffer_load_dwordx4', V(16 + 8 * g + 4 * q, 4), V(3), S(4, 4), S(14), mods=f"offen {'offset:1024 ' if q else ''}{cfg.rdflags}"))
        o.append(I('s_add_u32', S(14), S(14), 4096))
    o += [I('s_mul_hi_u32', S(16), S(12), 159072863), I('s_mul_i32', S(17), S(16), 27), I('s_sub_u32', S(17), S(12), S(17)),
          I('s_mul_hi_u32', S(18), S(17), 477218589), I('s_mul_i32', S(19), S(18), 9), I('s_sub_u32', S(19), S(17), S(19)),
          I('s_lshr_b32', S(20), S(16), 4), I('s_and_b32', S(21), S(16), 15),
          I('s_mul_i32', S(21), S(21), 96), I('s_lshl_b32', S(18), S(18), 5), I('s_add_u32', S(21), S(21), S(18)), I('s_mul_i32', S(21), S(21), 2304),
          I('s_mul_i32', S(20), S(20), 1152), I('s_add_u32', S(21), S(21), S(20)), I('s_lshl_b32', S(19), S(19), 7), I('s_add_u32', S(21), S(21), S(19)),
          I('s_lshl_b32', S(13), S(13), 6), I('s_add_u32', S(21), S(21), S(13)),
          I('v_and_b32', V(4), 31, V(2)), I('v_mul_u32_u24', V(4), 2304, V(4)), I('v_lshrrev_b32', V(5), 5, V(2)), I('v_lshl_add_u32', V(4), V(5), 4, V(4)),
          I('s_mov_b32', S(22), '0xffff0000')]
    acc = 80
    for g in range(8):
        o.append(Wait(vm=14 - 2 * g))
        for d in range(8):
            src = V(16 + 8 * g + d)
            if g == 0:
                o += [I('v_lshlrev_b32', V(acc + 2 * d), 16, src), I('v_and_b32', V(acc + 2 * d + 1), S(22), src)]
            else:
                o += [I('v_lshlrev_b32', V(6), 16, src), I('v_and_b32', V(7), S(22), src),
                      I('v_add_f32', V(acc + 2 * d), V(acc + 2 * d), V(6)), I('v_add_f32', V(acc + 2 * d + 1), V(acc + 2 * d + 1), V(7))]
    for d in range(8): o.append(I('v_cvt_pk_bf16_f32', V(8 + d), V(acc + 2 * d), V(acc + 2 * d + 1)))
    o += [I('s_nop', 1)]
    for q in range(2):
        o += [I('v_permlane32_swap_b32', V(8 + 4 * q), V(8 + 4 * q + 2)), I('v_permlane32_swap_b32', V(8 + 4 * q + 1), V(8 + 4 * q + 3))]
    for q in range(2):
        o.append(I('buffer_store_dwordx4', V(8 + 4 * q, 4), V(4), S(8, 4), S(21), mods=f"offen {'offset:32' if q else ''}"))
    o += [Label('L_rexit'), I('s_endpgm')]
    return o

def generate(path, cfg):
    global rare_sites
    rare_sites = []
    com = common_prologue(cfg)
    pa = build_a(cfg); pq = build_q(cfg); pr = build_reduce(cfg)
    errs = []
    for nm, prog in (("A", com + pa), ("Q", com + pq), ("R", pr)):
        tr = []; flatten(prog, tr); resolve_waits(tr)
        errs += check_trace(tr, nm, hook)
        print(nm, "trace len", len(tr), "est cycles", cost(tr), "barriers", sum(1 for x in tr if x.kind == 'barrier'), file=sys.stderr)
    for par in range(2):
        errs += check_trace([I(MF, V(O + 48, 16), V(32, 4), V(64, 4), V(O + 48, 16))] + rare_body(par) + [I(MF, V(SB[1 - par], 16), V(32, 4), V(QF, 4), V(NEGM, 16))], "rare")
    if errs:
        for e in errs[:40]: print("ERR", e, file=sys.stderr)
        raise SystemExit(f"{len(errs)} errors")
    a = Asm()
    file_begin(a, [("attn_main_kernel", 256, 256, L_END), ("attn_reduce_kernel", 432, 256, 0)])
    kernel_begin(a, "attn_main_kernel")
    t = []
    emit_text(com, t)
    emit_text([I('s_cmp_eq_u32', S(sW), 3), I('s_cbranch_scc1', 'L_qwave')], t)
    emit_text(pa, t)
    t.append("L_qwave:")
    emit_text(pq, t)
    t.append("L_exit:\n    s_endpgm")
    a("\n".join(t))
    kernel_begin(a, "attn_reduce_kernel")
    t = []; emit_text(pr, t); a("\n".join(t))
    kernel_desc(a, "attn_main_kernel", 512, 256)
    kernel_desc(a, "attn_reduce_kernel", 96, 96, 32)
    open(path, "w").write(a.text())

if __name__ == "__main__":
    ap = argparse.ArgumentParser()
    ap.add_argument("out")
    ap.add_argument("--stamps", action="store_true")
    ap.add_argument("--kvflags", default="nt"); ap.add_argument("--wflags", default=""); ap.add_argument("--stflags", default=""); ap.add_argument("--rdflags", default="")
    ap.add_argument("--thr", type=float, default=10.0)
    x = ap.parse_args()
    cfg = Cfg(); cfg.stamps = x.stamps; cfg.kvflags = x.kvflags; cfg.wflags = x.wflags; cfg.stflags = x.stflags; cfg.rdflags = x.rdflags; cfg.thr = x.thr
    generate(x.out, cfg)
```

```python
import re
from collections import deque

def regs_of(op):
    op = op.strip()
    neg = op.lstrip('-')
    m = re.fullmatch(r'([vas])\[(\d+):(\d+)\]', neg)
    if m:
        return [f"{m.group(1)}{i}" for i in range(int(m.group(2)), int(m.group(3)) + 1)]
    if re.fullmatch(r'[vas]\d+', neg):
        return [neg]
    if neg in ('vcc', 'exec', 'm0', 'scc'):
        return [neg]
    return []

def R(kind, lo, n=1):
    return f"{kind}{lo}" if n == 1 else f"{kind}[{lo}:{lo+n-1}]"
def V(lo, n=1): return R('v', lo, n)
def A(lo, n=1): return R('a', lo, n)
def S(lo, n=1): return R('s', lo, n)

TRANS = ('v_exp_f32', 'v_rcp_f32', 'v_log_f32', 'v_rsq_f32', 'v_sqrt_f32')

class Ins:
    def __init__(self, op, *ops, mods="", tag=None):
        self.op = op; self.ops = [str(o) for o in ops]; self.mods = mods; self.tag = tag
        self.reads = []; self.writes = []
        o = self.ops
        rd = lambda xs: [r for x in xs for r in regs_of(x)]
        if op.startswith('v_mfma'):
            self.kind = 'mfma'; self.writes = rd(o[:1]); self.srcab = rd(o[1:3]); self.srcc = rd(o[3:4]); self.reads = self.srcab + self.srcc
        elif op.startswith('ds_read'):
            self.kind = 'dsr'; self.writes = rd(o[:1]); self.reads = rd(o[1:])
        elif op.startswith('ds_write'):
            self.kind = 'dsw'; self.reads = rd(o)
        elif op.startswith('buffer_load') and 'lds' in mods.split():
            self.kind = 'dma'; self.reads = rd(o) + ['m0']
        elif op.startswith('buffer_load') or op.startswith('global_load'):
            self.kind = 'vld'; self.writes = rd(o[:1]); self.reads = rd(o[1:])
        elif op.startswith('buffer_store') or op.startswith('global_store') or op.startswith('buffer_atomic') or op.startswith('buffer_wbl2') or op.startswith('buffer_inv'):
            self.kind = 'vst'; self.reads = rd(o)
            if op.startswith('buffer_atomic') and 'sc0' in mods.split():
                self.writes = rd(o[:1])
        elif op.startswith('v_permlane') and 'swap' in op:
            self.kind = 'valu'; self.reads = rd(o); self.writes = rd(o)
        elif op.startswith('v_'):
            self.kind = 'trans' if op in TRANS else 'valu'
            self.writes = rd(o[:1]); self.reads = rd(o[1:])
            if op.startswith(('v_fmac', 'v_dot2c', 'v_writelane')): self.reads += self.writes
        elif op in ('s_barrier', 's_nop', 's_endpgm', 's_setprio', 's_sleep', 's_waitcnt'):
            self.kind = op[2:]
        elif op.startswith('s_cbranch') or op in ('s_branch',):
            self.kind = 'branch'
        elif op.startswith('s_cmp') or op.startswith('s_bitcmp'):
            self.kind = 'salu'; self.reads = rd(o); self.writes = ['scc']
        elif op.startswith('s_load') or op in ('s_memtime', 's_memrealtime'):
            self.kind = 'smem'; self.writes = rd(o[:1]); self.reads = rd(o[1:])
        elif op == 's_setpc_b64':
            self.kind = 'branch'; self.reads = rd(o)
        elif op == 's_call_b64':
            self.kind = 'branch'; self.writes = rd(o[:1])
        elif op.startswith('s_'):
            self.kind = 'salu'; self.writes = rd(o[:1]); self.reads = rd(o[1:])
        else:
            raise ValueError(op)
    def text(self):
        s = "    " + self.op
        if self.ops: s += " " + ", ".join(self.ops)
        if self.mods: s += " " + self.mods
        return s
    def states(self):
        return int(self.ops[0]) + 1 if self.op == 's_nop' else 1

class Label:
    kind = 'label'
    def __init__(self, name): self.name = name
    def text(self): return self.name + ":"

class Wait:
    kind = 'wait'
    def __init__(self, lg=None, vm=None):
        self.lg = lg; self.vm = vm; self.nlg = None; self.nvm = None
        self.reads = []; self.writes = []
    def text(self):
        p = []
        if self.nvm is not None: p.append(f"vmcnt({min(self.nvm,63)})")
        if self.nlg is not None: p.append(f"lgkmcnt({min(self.nlg,15)})")
        if not p: return "    s_nop 0"
        return "    s_waitcnt " + " ".join(p)
    def states(self): return 1

class Loop:
    kind = 'loop'
    def __init__(self, count, body): self.count = count; self.body = body

class Seq:
    kind = 'seq'
    def __init__(self, body): self.body = body

class NoTrace:
    kind = 'notrace'
    def __init__(self, body): self.body = body

def emit_text(items, out):
    for it in items:
        if it.kind == 'loop' or it.kind == 'notrace': emit_text(it.body, out)
        elif it.kind == 'seq': pass
        else: out.append(it.text())

def flatten(items, out):
    for it in items:
        if it.kind == 'loop':
            for _ in range(it.count): flatten(it.body, out)
        elif it.kind == 'seq': flatten(it.body, out)
        elif it.kind in ('notrace', 'label'): pass
        else: out.append(it)

def bump(it, ctx):
    t = getattr(it, 'tag', None)
    if t is not None and t[1]:
        ctx['cnt'][t[0]] = ctx['cnt'].get(t[0], -1) + 1
def opinfo(it, ctx):
    t = getattr(it, 'tag', None)
    return dict(stream=None if t is None else t[0], grp=None if t is None else ctx['cnt'].get(t[0], -1), regs=set(it.writes))
def grp(ctx, stream): return ctx['cnt'].get(stream, -1)

def resolve_waits(trace):
    vq = []; lq = []; ctx = dict(bar=-1, cnt={})
    for it in trace:
        k = it.kind
        bump(it, ctx)
        if k in ('dma', 'vld', 'vst'):
            vq.append(opinfo(it, ctx))
        elif k in ('dsr', 'dsw'):
            lq.append(set(it.writes))
        elif k == 'wait':
            if it.vm is not None:
                if isinstance(it.vm, int): n = it.vm
                else:
                    n = None
                    for i in range(len(vq) - 1, -1, -1):
                        if it.vm(vq[i], ctx): n = len(vq) - 1 - i; break
                if n is not None:
                    it.nvm = n if it.nvm is None else min(it.nvm, n)
                    vq = vq[max(0, len(vq) - n):] if n else []
            if it.lg is not None:
                if isinstance(it.lg, int): n = it.lg
                else:
                    need = set(r for x in it.lg for r in regs_of(x)); n = None
                    for i in range(len(lq) - 1, -1, -1):
                        if lq[i] & need: n = len(lq) - 1 - i; break
                if n is not None:
                    it.nlg = n if it.nlg is None else min(it.nlg, n)
                    lq = lq[max(0, len(lq) - n):] if n else []
        elif k == 'waitcnt':
            t = " ".join(it.ops)
            m = re.search(r'vmcnt\((\d+)\)', t)
            if m: n = int(m.group(1)); vq = vq[max(0, len(vq) - n):] if n else []
            m = re.search(r'lgkmcnt\((\d+)\)', t)
            if m: n = int(m.group(1)); lq = lq[max(0, len(lq) - n):] if n else []

def check_trace(trace, name="", hook=None):
    errs = []
    lq = []; vq = []; sm = set(); ctx = dict(cnt={}); lastscc = ''
    hist = deque(maxlen=24)
    def err(i, msg): errs.append(f"{name}[{i}] {trace[i].text().strip()}: {msg}")
    for i, it in enumerate(trace):
        k = it.kind
        rw = set(it.reads) | set(it.writes)
        bump(it, ctx)
        if hook is not None:
            m = hook(it, ctx, vq, lq)
            if m: err(i, m)
        if k not in ('wait', 'waitcnt'):
            for q, nm in ((lq, 'lds'), (vq, 'vmem')):
                for w in q:
                    w = w['regs']
                    if w & rw and not (k == 'vld' and nm == 'vmem' and not (w & set(it.reads))): err(i, f"touches {sorted(w & rw)[:3]} with {nm} load outstanding")
            if sm & rw and k != 'smem': err(i, f"touches {sorted(sm & rw)} with smem outstanding")
        dist = 0
        for p in reversed(hist):
            pw = set(p.writes); pk = p.kind
            need = 0
            if pk == 'mfma':
                npass = 8 if '32x32' in p.op else 4
                long_ = {8: 12, 4: 8}[npass]; ovl = {8: 10, 4: 6}[npass]; war = {8: 7, 4: 3}[npass]
                if k == 'mfma':
                    if pw & set(it.srcab): need = long_
                    elif pw & set(it.srcc) and not (it.srcc == p.writes and it.op == p.op): need = ovl
                    elif pw & set(it.writes) and not (it.srcc == p.writes): need = ovl
                elif k in ('valu', 'trans', 'dsr', 'dsw', 'vld', 'vst', 'dma'):
                    if pw & rw: need = long_
                    if k in ('valu', 'trans') and set(p.srcc) & set(it.writes): need = max(need, war)
            elif pk in ('valu', 'trans'):
                vw = set(x for x in pw if x[0] in 'va' and x != 'vcc'); sw = pw - vw
                if k == 'mfma' and vw & set(it.reads): need = 2
                if pk == 'trans' and k in ('valu',) and vw & set(it.reads): need = max(need, 1)
                if it.kind == 'valu' and it.op.startswith('v_permlane') and vw & set(it.reads): need = max(need, 2)
                if it.kind == 'valu' and it.op.startswith(('v_readfirstlane', 'v_readlane')) and vw & set(it.reads): need = max(need, 1)
                if k in ('valu', 'trans') and sw & set(it.reads): need = max(need, 2)
                if k in ('dma', 'vld', 'vst') and sw & set(it.reads): need = max(need, 5)
            elif pk == 'salu':
                if 'm0' in pw and k == 'dma': need = 1
            elif pk == 'vst':
                if ('x4' in p.op or 'x3' in p.op) and k in ('valu', 'trans', 'dsr', 'vld') and set(regs_of(p.ops[0])) & set(it.writes): need = 2
            if need > dist: err(i, f"needs {need} wait states after '{p.text().strip()}', has {dist}")
            dist += p.states()
            if dist > 20: break
        hist.append(it)
        op = getattr(it, 'op', '')
        if op.startswith(('s_cselect', 's_cbranch_scc')) and not lastscc.startswith(('s_cmp', 's_bitcmp')): err(i, f"scc last written by {lastscc}")
        if op.startswith(('s_cmp', 's_bitcmp', 's_add', 's_sub', 's_and', 's_or', 's_xor', 's_lshl', 's_lshr', 's_ashr', 's_bfe', 's_min', 's_max', 's_not')): lastscc = op
        if k in ('dsr', 'dsw'): lq.append(opinfo(it, ctx))
        elif k in ('dma', 'vld', 'vst'): vq.append(opinfo(it, ctx))
        elif k == 'smem': sm |= set(it.writes)
        elif k == 'wait':
            if it.nvm is not None: n = min(it.nvm, 63); vq = vq[max(0, len(vq) - n):] if n else []
            if it.nlg is not None:
                n = min(it.nlg, 15); lq = lq[max(0, len(lq) - n):] if n else []
                if n == 0: sm = set()
        elif k == 'waitcnt':
            t = " ".join(it.ops)
            m = re.search(r'vmcnt\((\d+)\)', t)
            if m: n = int(m.group(1)); vq = vq[max(0, len(vq) - n):] if n else []
            m = re.search(r'lgkmcnt\((\d+)\)', t)
            if m:
                n = int(m.group(1)); lq = lq[max(0, len(lq) - n):] if n else []
                if n == 0: sm = set()
    return errs

def interleave(mfmas, gaps):
    out = []
    for j, m in enumerate(mfmas):
        if isinstance(m, list): out += m
        else: out.append(m)
        out += gaps[j]
    return out


def weight(it):
    if it.kind == 'trans': return 2
    if it.kind in ('label', 'mark'): return 0
    if getattr(it, 'op', '') == 's_nop': return it.states()
    return 1

def spread(gaps, items, g0, g1):
    n = g1 - g0 + 1
    tot = sum(weight(i) for i in items) + sum(sum(weight(i) for i in gaps[g]) for g in range(g0, g1 + 1))
    target = tot / n
    g = g0
    for it in items:
        while g < g1 and sum(weight(i) for i in gaps[g]) + weight(it) / 2.0 > target: g += 1
        gaps[g].append(it)

def cost(items):
    t = 0; mf_free = 0
    for it in items:
        if it.kind in ('label', 'mark'): continue
        if it.kind == 'mfma':
            t = max(t, mf_free); mf_free = t + (32 if '32x32' in it.op else 16); t += 8
        else: t += 4 * weight(it)
    return max(t, mf_free)

class Mark:
    kind = 'mark'
    def __init__(self, tag): self.tag = tag; self.reads = []; self.writes = []
    def text(self): return "    ; mark"
    def states(self): return 0

def spread_even(gaps, items, g0, g1):
    chunks = []; cur = []
    for it in items:
        cur.append(it)
        if it.kind == 'dma': chunks.append(cur); cur = []
    if cur:
        if chunks: chunks[-1] += cur
        else: chunks.append(cur)
    n = g1 - g0 + 1
    for i, c in enumerate(chunks):
        gaps[g0 + (i * n) // len(chunks)] += c
```

```python
import sys, argparse
from asmlib import *
from fw import *

I = Ins
NS = 5; SLOT = 17408; PIECE = 1088; TILE = 8704
L_WQ = 0; L_RING = 26112; L_QB = L_RING + NS * SLOT; L_XP = L_QB + 24576; L_END = L_XP + 26112
assert L_END == 163840
KWQ = 2176; WQRING = 12; LA = 10
PART_BYTES = 256 * 27 * 4096
STAMP_OFF = 64 * 1024 * 1024
MF = 'v_mfma_f32_32x32x16_bf16'
sW = 3; SK = 4; SV = 8; SWO = 12; SWQ = 16; SWS = 20; SX = 24
sR = 28; sLC = 29; sRET = 30
sKo = 32; sVo = 33; sWoo = 34; sWqo = 35; sRd = 36; sDm = 37; sDmK = 38; sDmW = 39; sWK = 40; sWW = 41; sWX = 42
sB = 43; sG = 44; sBlk = 45; sT = 46; sC = 47; sT0 = 48; sT1 = 49; sT2 = 50; sEta = 51; sRot = 52; sHalf = 53; sSt = 54; sGam = 55
sST = 80
SOUT = 56; SDBG = 60; sPq = 64
vKl0 = 1; vKl1 = 2; vVl = 3; vK0 = 4; vK1 = 5; vV = 6; vDK = 7; vDV = 8; vDW = 9
vT0 = 10; vT1 = 11; vT2 = 12; vLane = 13
vQl = 14; vL0 = 15; vL1 = 16; vMx = 17; vSt = 18
FB = 32; P = 64; NEGM = 80; SB = (96, 112); QF = 128; O = 160
def OUT(t): return A(16 * t, 16) if t < 16 else V(224 + 16 * (t - 16), 16)
vWl = 19; vX0 = 15; vX1 = 16; vQWl = 17; vQW = 18; vDQ0 = 20; vDQ1 = 21; vDKa = 22; vDVa = 23
WF = 24; XT = 40; PK = 64; ACC = 72; XR = 168
def XF(k, w):
    if k >= 28: return V(XT + 12 * (k & 1) + 4 * w, 4)
    n = 3 * k + w
    return A(4 * n, 4) if n < 64 else V(XR + 4 * (n - 64), 4)

class Cfg:
    stamps = False; kvflags = "nt"; wflags = ""; stflags = ""; thr = 10.0; dump = None

def fixup(seq):
    out = []
    for it in seq:
        if it.kind == 'dma' and out and out[-1].kind == 'salu' and 'm0' in out[-1].writes:
            m = out[-1]
            p = out[-2] if len(out) > 1 else None
            if p is not None and p.kind in ('valu', 'trans', 'dsr', 'dsw', 'mfma', 'salu') and not (set(p.writes) & set(m.reads)) and 'm0' not in p.writes and not (p.kind == 'salu' and ('scc' in p.writes or p.op.startswith('s_cselect'))):
                out[-2], out[-1] = m, p
            else:
                out.append(I('s_nop', 0))
        out.append(it)
    return out

def step_type(s):
    s %= 26
    return 'K' if s == 0 else 'KV' if s <= 15 else 'V' if s == 16 else 'W'

def dma_group(ty, cfg, role):
    o = []; first = [True]
    a = cfg.nA // 2
    nkv = a if role == 'A' else 8 - 3 * a
    nw = cfg.nA if role == 'A' else 16 - 3 * cfg.nA
    def ld(m0src, m0add, voff, srd, soff, off, fl):
        if off > 4095:
            o.append(I('s_add_u32', 'm0', S(m0src), m0add)); o.append(I('s_add_u32', S(sT2), S(soff), off)); soff = sT2; off = 0
        else:
            m0add -= off
            if m0add == 0: o.append(I('s_mov_b32', 'm0', S(m0src)))
            elif m0add > 0: o.append(I('s_add_u32', 'm0', S(m0src), m0add))
            else: o.append(I('s_sub_u32', 'm0', S(m0src), -m0add))
        o.append(I('buffer_load_dwordx4', V(voff), S(srd, 4), S(soff), mods=f"offen {'offset:%d ' % off if off else ''}{fl} lds", tag=('main', first[0])))
        first[0] = False
    if 'K' in ty:
        for i in range(nkv): ld(sDmK, i * PIECE, vDK, SK, sKo, 1024 * i, cfg.kvflags)
        o.append(I('s_add_u32', S(sKo), S(sKo), 8192))
    if 'V' in ty:
        for i in range(nkv): ld(sDmK, TILE + i * PIECE, vDV, SV, sVo, 256 * i, cfg.kvflags)
        o.append(I('s_add_u32', S(sVo), S(sVo), 8192))
    if ty == 'W':
        for k in range(nw): ld(sDmW, k * PIECE, vDW, SWO, sWoo, 1152 * k, cfg.wflags)
        o.append(I('s_add_u32', S(sWoo), S(sWoo), 128))
    if first[0]: o.append(Mark(('main', True)))
    return o

def split_group(d):
    idx = [i for i, x in enumerate(d) if x.kind == 'dma']
    if len(idx) < 2: return d, []
    n = max(1, (len(idx) * 3 + 4) // 8)
    c = idx[n - 1] + 1
    return d[:c], d[c:]

def slot_advance(awave):
    o = [I('s_add_u32', S(sDmK), S(sRd), S(sWK)), I('s_add_u32', S(sDmW), S(sRd), S(sWW)),
         I('s_add_u32', S(sRd), S(sRd), SLOT), I('s_cmp_eq_u32', S(sRd), L_RING + NS * SLOT), I('s_cselect_b32', S(sRd), L_RING, S(sRd))]
    return o
def addr_update(nextty):
    o = []
    if 'K' in nextty: o += [I('v_add_u32', V(vK0), S(sRd), V(vKl0)), I('v_add_u32', V(vK1), S(sRd), V(vKl1))]
    if nextty != 'K': o += [I('v_add_u32', V(vV), S(sRd), V(vVl))]
    return o

def main_wait(lg=0, wq_ahead=None):
    def pred(op, ctx):
        if op['stream'] == 'main' and op['grp'] <= grp(ctx, 'mbar') + 1: return True
        if wq_ahead is not None and op['stream'] == 'wq' and op['grp'] <= grp(ctx, 'wqr') + wq_ahead: return True
        return False
    return Wait(lg=lg, vm=pred)
def mbar(): return I('s_barrier', tag=('mbar', True))

def head_setup_kv(rreg_plus):
    return [I('s_add_u32', S(sT0), S(sR), S(sB)), I('s_add_u32', S(sT0), S(sT0), rreg_plus), I('s_and_b32', S(sT0), S(sT0), 3),
            I('s_lshl_b32', S(sT1), S(sG), 2), I('s_add_u32', S(sT0), S(sT0), S(sT1)),
            I('s_lshl_b32', S(sT1), S(sB), 5), I('s_add_u32', S(sT0), S(sT0), S(sT1)),
            I('s_lshl_b32', S(sKo), S(sT0), 17), I('s_mov_b32', S(sVo), S(sKo))]
def head_setup_wo():
    return [I('s_add_u32', S(sT0), S(sR), S(sB)), I('s_and_b32', S(sT0), S(sT0), 3),
            I('s_lshl_b32', S(sT1), S(sG), 2), I('s_add_u32', S(sT0), S(sT0), S(sT1)), I('s_mul_i32', S(sWoo), S(sT0), 147456)]
def extra_salu(s):
    if s == 11: return head_setup_wo()
    if s == 16: return head_setup_kv(1)
    return []

def fb(n): return FB + 4 * (n % 8)
def rd_K(i): return [I('ds_read_b128', V(fb(i), 4), V(vK0 if i % 2 == 0 else vK1), mods=f"offset:{64 * (i >> 1)}")]
def rd_V(i, n):
    tp, dt = i // 4, i % 4
    return [I('ds_read_b64_tr_b16', V(fb(n) + 2 * u, 2), V(vV), mods=f"offset:{TILE + (2 * tp + u) * 256 + dt * 64}") for u in range(2)]
def rd_W(n):
    u, t = n // 8, n % 8
    return [I('ds_read_b64_tr_b16', V(fb(n) + 2 * v, 2), V(vV), mods=f"offset:{v * TILE + t * 128 + u * 64}") for v in range(2)]
def rd_Q(i): return [I('ds_read_b128', V(QF + 4 * i, 4), V(vQl), mods=f"offset:{1024 * i}")]
def rd_first(ty, i):
    if ty == 'K': return rd_K(i) + rd_Q(i)
    if ty == 'KV': return rd_K(i)
    if ty == 'V': return rd_V(i, i)
    return rd_W(i)
def FBr(n): return V(fb(n), 4)

def mf_qk(g, i, first=False):
    s = V(SB[g % 2], 16)
    c = s if i else ('0' if first else V(NEGM, 16))
    return I(MF, s, FBr(i), V(QF + 4 * i, 4), c)
def mf_pv(i, n, zero=False):
    tp, dt = i // 4, i % 4
    d = V(O + 16 * dt, 16)
    return I(MF, d, FBr(n), V(P + 4 * tp, 4), '0' if (zero and tp == 0) else d)
def mf_out(p, n):
    u, t = n // 8, n % 8
    d = OUT(2 * p + u)
    return I(MF, d, FBr(n), V(QF + 4 * t, 4), d)

def softmax_lists(g):
    s = SB[g % 2]
    E = [I('v_exp_f32', V(s + i), V(s + i)) for i in range(16)]
    C = [I('v_cvt_pk_bf16_f32', V(P + k), V(s + 2 * k), V(s + 2 * k + 1)) for k in range(8)]
    Ad = [I('v_add_f32', V(vL0 + (i & 1)), V(vL0 + (i & 1)), V(s + i)) for i in range(16)]
    return E, C, Ad
def max_list(g):
    s = SB[g % 2]
    o = [I('v_max3_f32', V(vMx), V(s), V(s + 1), V(s + 2))]
    for i in range(3, 15, 2): o.append(I('v_max3_f32', V(vMx), V(vMx), V(s + i), V(s + i + 1)))
    o.append(I('v_max_f32', V(vMx), V(vMx), V(s + 15)))
    return o

def trace_pt(cfg):
    if not cfg.trace: return []
    return [I('s_mov_b32', 'm0', S(77)), I('s_nop', 0), I('v_writelane_b32', V(20), S(96), 'm0'), I('v_writelane_b32', V(21), S(98), 'm0'), I('s_memrealtime', S(96, 2)), I('s_memtime', S(98, 2)),
            I('s_add_u32', S(76), S(76), 1), I('s_lshr_b32', S(77), S(76), 1) if cfg.trace == 2 else I('s_min_u32', S(77), S(76), 63)]
def trace_flush(cfg):
    if not cfg.trace: return []
    return [I('s_mov_b64', 'exec', -1), I('s_lshl_b32', S(sT0), S(2), 2), I('s_add_u32', S(sT0), S(sT0), S(sW)), I('s_lshl_b32', S(sT0), S(sT0), 9), I('s_add_u32', S(sT0), S(sT0), STAMP_OFF + 131072),
            I('s_mov_b32', S(SWS + 2), STAMP_OFF + 131072 + 524288), I('v_lshlrev_b32', V(vT0), 2, V(vLane)),
            I('buffer_store_dword', V(20), V(vT0), S(SWS, 4), S(sT0), mods="offen"), I('buffer_store_dword', V(21), V(vT0), S(SWS, 4), S(sT0), mods="offen offset:256")]
def tail_gaps(gaps, L, s, cfg, nextty, dmaty, do_bar=True):
    b = L - 6
    if do_bar:
        pre = slot_advance(True) + addr_update(nextty)
        spread(gaps, pre, max(b - 2, 0), b - 1)
        gaps[b] = gaps[b] + [main_wait(0), mbar()] + trace_pt(cfg)
        for i in range(8):
            gaps[b + max(0, i - 2)] += rd_first(nextty, i)
    d = dma_group(dmaty, cfg, 'A') if dmaty else []
    if cfg.spreadA: d = split_group(d)[0]
    return d + extra_salu(s + 1)
def head_dma(s, cfg, last=False):
    if not cfg.spreadA or (last and s + 4 >= 26): return []
    return split_group(dma_group(step_type(s + 4), cfg, 'A'))[1]

rare_sites = []
def att_step(s, cfg, name):
    g = s
    nextty = step_type(s + 1)
    mf = [mf_qk(g, i) for i in range(8)] + [mf_pv(i, 8 + i, zero=(s == 1)) for i in range(8)]
    gaps = [[] for _ in range(16)]
    for i in range(8): gaps[i] += rd_V(i, 8 + i)
    E, C, Ad = softmax_lists(g - 1)
    spread_even(gaps, head_dma(s, cfg), 0, 7)
    d = tail_gaps(gaps, 16, s, cfg, nextty, step_type(s + 5))
    p1 = E[0:4] + [C[0]] + E[4:6] + [C[1]] + E[6:8] + [C[2]] + E[8:10] + [C[3]] + Ad[0:2] + E[10:12] + [C[4]] + Ad[2:4] + E[12:14] + [C[5]]
    spread(gaps, p1, 0, 6)
    p2 = E[14:16] + Ad[4:5] + [C[6], C[7]] + Ad[5:10]
    spread(gaps, p2, 7, 9)
    mx = max_list(g)
    rest = []
    q1 = Ad[10:16] + mx + [I('v_cmp_lt_f32', 'vcc', S(sT), V(vMx))]
    while q1 or d:
        if d: rest.append(d.pop(0))
        if q1: rest.append(q1.pop(0))
    spread(gaps, rest, 10, 15)
    mf[0] = [Wait(lg=[FBr(0), FBr(1), FBr(2), FBr(3)]), mf[0]]
    mf[4] = [Wait(lg=[FBr(4), FBr(5), FBr(6), FBr(7)]), mf[4]]
    mf[8] = [Wait(lg=[FBr(8), FBr(9), FBr(10)]), mf[8]]
    seq = fixup(interleave(mf, gaps))
    seq += [I('s_cbranch_vccnz', f"L_rare_{name}"), Label(f"L_back_{name}")]
    rare_sites.append((name, g % 2))
    return seq

def att_step0(cfg):
    mf = [mf_qk(0, i, first=True) for i in range(8)]
    gaps = [[] for _ in range(8)]
    gaps[0] += head_dma(0, cfg)
    d = tail_gaps(gaps, 8, 0, cfg, 'KV', step_type(5))
    spread(gaps, d, 2, 7)
    q = [V(QF + 4 * i, 4) for i in range(8)]
    mf[0] = [Wait(lg=[FBr(0), FBr(1), FBr(2)] + q[:3]), mf[0]]
    seq = fixup(interleave(mf, gaps))
    s = SB[0]
    seq += [I('v_mov_b32', V(vL0), 0), I('v_mov_b32', V(vL1), 0), I('s_nop', 9)]
    seq += max_list(0)
    seq += [I('v_mov_b32', V(vT0), V(vMx)), I('s_nop', 1), I('v_permlane32_swap_b32', V(vT0), V(vMx)), I('v_max_f32', V(vMx), V(vMx), V(vT0))]
    seq += [I('v_sub_f32', V(NEGM + i), 0, V(vMx)) for i in range(16)]
    seq += [I('v_sub_f32', V(s + i), V(s + i), V(vMx)) for i in range(16)]
    return seq

def att_step16(cfg):
    mf = [mf_pv(i, i) for i in range(8)]
    gaps = [[] for _ in range(8)]
    E, C, Ad = softmax_lists(15)
    pre = E[0:4] + [C[0]] + E[4:6] + [C[1]] + E[6:8] + [C[2]] + E[8:10] + [C[3]] + Ad[0:4]
    hd = head_dma(16, cfg); pre2 = []
    while pre or hd:
        if hd: pre2.append(hd.pop(0))
        pre2 += pre[:2]; pre = pre[2:]
    pre = fixup(pre2)
    d = tail_gaps(gaps, 8, 16, cfg, 'W', step_type(21))
    spread(gaps, E[10:12] + [C[4]] + E[12:14] + [C[5]] + E[14:16] + Ad[4:5] + [C[6], C[7]] + Ad[5:7], 0, 3)
    red = Ad[7:16] + [I('v_add_f32', V(vL0), V(vL0), V(vL1)), I('v_mov_b32', V(vT0), V(vL0)), I('s_nop', 1),
                      I('v_permlane32_swap_b32', V(vT0), V(vL0)), I('v_add_f32', V(vL0), V(vL0), V(vT0)), I('v_rcp_f32', V(vL0), V(vL0))]
    rest = []
    while red or d:
        if d: rest.append(d.pop(0))
        if red: rest.append(red.pop(0))
    spread(gaps, rest, 4, 7)
    mf[0] = [Wait(lg=[FBr(0), FBr(1), FBr(2)]), mf[0]]
    seq = pre + fixup(interleave(mf, gaps))
    seq += [I('s_nop', 1)]
    for dt in range(4):
        for i in range(16): seq.append(I('v_mul_f32', V(O + 16 * dt + i), V(O + 16 * dt + i), V(vL0)))
        for k in range(8): seq.append(I('v_cvt_pk_bf16_f32', V(QF + 8 * dt + k), V(O + 16 * dt + 2 * k), V(O + 16 * dt + 2 * k + 1)))
    seq += [I('s_nop', 0)]
    return seq

def store_tile(t, q0, cfg, buf):
    tmp = O + 32 * buf; pk = tmp + 16
    o = []
    for k in range(8):
        if t < 16:
            o += [I('v_accvgpr_read_b32', V(tmp + 2 * k), A(16 * t + 2 * k)), I('v_accvgpr_read_b32', V(tmp + 2 * k + 1), A(16 * t + 2 * k + 1))]
            o += [I('v_cvt_pk_bf16_f32', V(pk + k), V(tmp + 2 * k), V(tmp + 2 * k + 1))]
        else:
            b = 224 + 16 * (t - 16)
            o += [I('v_cvt_pk_bf16_f32', V(pk + k), V(b + 2 * k), V(b + 2 * k + 1))]
        if k % 4 == 3:
            q = q0 + k // 4
            o.append(I('buffer_store_dwordx4', V(pk + k - 3, 4), V(vSt), S(SWS, 4), S(sSt), mods=f"offen {'offset:%d ' % (1024 * q) if q else ''}{cfg.stflags}"))
    return o

def out_step(p, cfg, last):
    s = 17 + p
    mf = [mf_out(p, n) for n in range(16)]
    gaps = [[] for _ in range(16)]
    for i in range(8): gaps[i] += rd_W(8 + i)
    final = last and p == 8
    nextty = step_type(s + 1)
    dmaty = step_type(s + 5)
    if last and s + 5 >= 26: dmaty = None
    spread_even(gaps, head_dma(s, cfg, last), 0, 7)
    d = tail_gaps(gaps, 16, s, cfg, nextty, dmaty, do_bar=not final)
    if last:
        if p > 0:
            spread(gaps, store_tile(2 * p - 1, 2, cfg, 1) + [I('s_add_u32', S(sSt), S(sSt), 32768)], 2, 7)
        st = ([I('s_nop', 3)] if final else []) + store_tile(2 * p, 0, cfg, 0)
        rest = []
        while st or d:
            if d: rest.append(d.pop(0))
            if st: rest.append(st.pop(0))
            if st: rest.append(st.pop(0))
        spread(gaps, rest, 10, 15)
    else:
        spread(gaps, d, 10, 15)
    mf[0] = [Wait(lg=[FBr(0), FBr(1), FBr(2), FBr(3)]), mf[0]]
    mf[4] = [Wait(lg=[FBr(4), FBr(5), FBr(6), FBr(7)]), mf[4]]
    mf[8] = [Wait(lg=[FBr(8), FBr(9), FBr(10)] if not final else [FBr(i) for i in range(8, 12)]), mf[8]]
    if final: mf[12] = [Wait(lg=0), mf[12]]
    seq = fixup(interleave(mf, gaps))
    if final:
        seq += [I('s_nop', 11)] + store_tile(17, 2, cfg, 1)
    return seq

def rare_code():
    o = []
    for name, par in rare_sites:
        o += [Label(f"L_rare_{name}"), I('s_call_b64', S(sRET, 2), f"L_rare_sub{par}"), I('s_branch', f"L_back_{name}")]
    for par in range(2):
        o += [Label(f"L_rare_sub{par}")] + rare_body(par) + [I('s_setpc_b64', S(sRET, 2))]
    return o
def rare_body(par):
    s = SB[par]
    o = [I('s_nop', 11), I('v_mov_b32', V(vT0), V(vMx)), I('s_nop', 1), I('v_permlane32_swap_b32', V(vT0), V(vMx)),
         I('v_max3_f32', V(vMx), V(vMx), V(vT0), 0), I('v_sub_f32', V(vT0), 0, V(vMx)), I('v_exp_f32', V(vT0), V(vT0))]
    o += [I('v_sub_f32', V(s + i), V(s + i), V(vMx)) for i in range(16)]
    o += [I('v_sub_f32', V(NEGM + i), V(NEGM + i), V(vMx)) for i in range(16)]
    o += [I('v_mul_f32', V(vL0), V(vL0), V(vT0)), I('v_mul_f32', V(vL1), V(vL1), V(vT0))]
    o += [I('v_mul_f32', V(O + i), V(O + i), V(vT0)) for i in range(64)]
    o += [I('s_nop', 1)]
    return o

def stamp(cfg, n):
    return [I(cfg.clk, S(sST + 2 * n, 2))] if cfg.stamps else []
def stamp_flush(cfg):
    if not cfg.stamps: return []
    o = [I('s_waitcnt', 'vmcnt(0)'), I(cfg.clk, S(sST + 14, 2)), I('s_waitcnt', 'vmcnt(0) lgkmcnt(0)'),
         I('s_lshl_b32', S(sT0), S(2), 2), I('s_add_u32', S(sT0), S(sT0), S(sW)), I('s_lshl_b32', S(sT0), S(sT0), 6),
         I('s_add_u32', S(sT0), S(sT0), STAMP_OFF), I('s_mov_b32', S(SWS + 2), STAMP_OFF + 65536), I('v_mov_b32', V(vT0), 0), I('s_mov_b64', 'exec', 1)]
    for q in range(4):
        o += [I('v_mov_b32', V(32 + 4 * q + i), S(sST + 4 * q + i)) for i in range(4)]
        o += [I('buffer_store_dwordx4', V(32 + 4 * q, 4), V(vT0), S(SWS, 4), S(sT0), mods=f"offen offset:{16 * q}")]
    return o

def wq0_loc(k):
    if k < 6: return L_WQ + 2 * KWQ * k
    if k < 26: return L_RING + 2 * KWQ * (k - 6)
    if k < 31: return L_QB + 2 * KWQ * (k - 26)
    if k < 35: return L_RING + 2 * KWQ * (k - 31)
    return L_WQ + 2 * KWQ * 5
def pbar(): return I('s_barrier', tag=('pbar', True))

def a_program(cfg):
    pro = []
    w = sW
    pro += [I('v_lshlrev_b32', V(vT0), 4, V(vLane)), I('s_lshl_b32', S(sT0), S(w), 13), I('s_add_u32', S(sT0), S(sT0), L_QB),
            I('v_add_u32', V(vQl), S(sT0), V(vT0)), I('v_mov_b32', V(vSt), V(vT0)),
            I('s_mul_i32', S(sT0), S(sGam), 27), I('s_mul_i32', S(sT1), S(w), 9), I('s_add_u32', S(sT0), S(sT0), S(sT1)),
            I('s_lshl_b32', S(sT0), S(sT0), 3), I('s_add_u32', S(sT0), S(sT0), S(sG)), I('s_lshl_b32', S(sSt), S(sT0), 12)]
    if cfg.pf:
        pro += [I('s_getpc_b64', S(68, 2)), Label('L_pcref'), I('s_mov_b32', S(70), 'L_exit-L_pcref'), I('s_mov_b32', S(71), '0x20000'),
                I('s_lshr_b32', S(sT0), S(2), 3), I('s_mul_i32', S(sT0), S(sT0), 3), I('s_add_u32', S(sT0), S(sT0), S(w)), I('s_lshl_b32', S(sT0), S(sT0), 10),
                I('buffer_load_dwordx4', V(FB, 4), V(vSt), S(68, 4), S(sT0), mods="offen")]
    if cfg.trace == 1: pro += [I('s_mov_b32', S(76), 0), I('s_mov_b32', S(77), 0), I('v_mov_b32', V(20), 0), I('v_mov_b32', V(21), 0), I('s_memrealtime', S(96, 2)), I('s_memtime', S(98, 2))] + [I('s_waitcnt', 'lgkmcnt(0)')]
    tp = lambda: trace_pt(cfg) if cfg.trace == 1 else []
    pro += head_setup_kv(0) + [I('s_add_u32', S(sKo), S(sKo), 4 * 8192), I('s_add_u32', S(sVo), S(sVo), 3 * 8192), I('s_mov_b32', S(sRd), L_RING)]
    pro += [Mark(('main', True)) for _ in range(4)]
    pro += [I('v_accvgpr_write_b32', A(i), 0) for i in range(144, 256)] + [I('v_mov_b32', V(224 + i), 0) for i in range(32)]
    pro += [I('s_mul_i32', S(sT1), S(w), TILE)]
    pro += [I('s_waitcnt', f"vmcnt({1 if cfg.pf else 0})"), I('s_barrier')] + stamp(cfg, 2) + tp()
    for D in range(5):
        base = L_RING + 3 * D * TILE if D < 4 else L_XP
        ra, rb = (vK0, vK1) if D % 2 == 0 else (vT0, vT1)
        pro += [I('s_add_u32', S(sT0), S(sT1), base), I('v_add_u32', V(ra), S(sT0), V(vKl0)), I('v_add_u32', V(rb), S(sT0), V(vKl1))]
        for sx in range(8):
            k = 8 * D + sx if D < 4 else 28 + sx
            if D < 4 and k >= 28: continue
            pro.append(I('ds_read_b128', A(4 * k, 4), V(ra if sx % 2 == 0 else rb), mods=f"offset:{64 * (sx >> 1)}"))
    pro += [I('s_waitcnt', 'vmcnt(0) lgkmcnt(0)'), I('s_barrier')] + tp() + [I('s_waitcnt', 'lgkmcnt(0)')]
    SEG = 61440
    pro += [I('v_add_u32', V(vK0), SEG, V(vWl)), I('v_add_u32', V(vK1), 2 * SEG, V(vWl))]
    bank = lambda j, n: (FB if j % 2 == 0 else 64) + 4 * n
    def rd0(j, n):
        k, dt = 2 * j + n // 4, n % 4
        loc = wq0_loc(k); sg = loc // SEG
        return [I('ds_read_b64_tr_b16', V(bank(j, n) + 2 * v, 2), V((vWl, vK0, vK1)[sg]), mods=f"offset:{loc - sg * SEG + (dt >> 1) * KWQ + (dt & 1) * 64 + v * 256}") for v in range(2)]
    def mf0(j, n):
        k, dt = 2 * j + n // 4, n % 4
        d = V(O + 16 * dt, 16)
        return I(MF, d, V(bank(j, n), 4), A(4 * k, 4), d if k else '0')
    pro += [pbar()] + tp()
    for n in range(8): pro += rd0(0, n)
    for j in range(1, 19):
        gaps = [[] for _ in range(8)]
        if j < 18:
            pro += [Wait(lg=0), pbar()] + tp()
            for n in range(8): gaps[n // 2] += rd0(j, n)
        else:
            if cfg.trace == 2: pro += [I('s_mov_b32', S(76), 0), I('s_mov_b32', S(77), 0), I('v_mov_b32', V(20), 0), I('v_mov_b32', V(21), 0), I('s_memrealtime', S(96, 2)), I('s_memtime', S(98, 2))]
            pro += [Wait(lg=0)] + slot_advance(True) + addr_update('K') + [main_wait(0), mbar()] + stamp(cfg, 1) + trace_pt(cfg)
            for n in range(8): gaps[n // 2] += rd_K(n)
            d4 = dma_group(step_type(4), cfg, 'A')
            spread(gaps, split_group(d4)[0] if cfg.spreadA else d4, 4, 7)
        if j >= 2:
            z = [I('v_accvgpr_write_b32', A(8 * (j - 2) + i), 0) for i in range(8)]
            spread(gaps, z, 4, 7)
        pro += fixup(interleave([mf0(j - 1, n) for n in range(8)], gaps))
    pro += [I('v_accvgpr_write_b32', A(8 * 17 + i), 0) for i in range(8)] + [I('s_nop', 3)]
    for dt in range(4):
        for i in range(16): pro.append(I('v_mul_f32', V(O + 16 * dt + i), S(sC), V(O + 16 * dt + i)))
        for k in range(8): pro.append(I('v_cvt_pk_bf16_f32', V(QF + 8 * dt + k), V(O + 16 * dt + 2 * k), V(O + 16 * dt + 2 * k + 1)))
    pro += [I('s_nop', 0)]
    s0 = att_step0(cfg); s1 = att_step(1, cfg, "s1")
    lp = [Label("L_aloop")] + att_step(2, cfg, "s2") + att_step(3, cfg, "s3") + [I('s_sub_u32', S(sLC), S(sLC), 1), I('s_cmp_lg_u32', S(sLC), 0), I('s_cbranch_scc1', 'L_aloop')]
    return pro, s0, s1, lp

def build_a(cfg):
    pro, s0, s1, lp = a_program(cfg)
    att = s0 + s1 + [I('s_mov_b32', S(sLC), 4), Loop(4, lp)]
    for s in range(10, 16): att += att_step(s, cfg, f"s{s}")
    att += att_step16(cfg)
    outn = []; outl = []
    for p in range(9): outn += out_step(p, cfg, False)
    for p in range(9): outl += out_step(p, cfg, True)
    chk = [I('s_cmp_eq_u32', S(sR), 3), I('s_cbranch_scc1', 'L_alast')]
    nxt = [I('s_add_u32', S(sR), S(sR), 1)]
    rs = []
    if cfg.stamps:
        for rr, n in ((1, 5), (3, 6)):
            rs += [I('s_cmp_eq_u32', S(sR), rr), I('s_cbranch_scc0', f'L_nost{n}')] + stamp(cfg, n) + [Label(f'L_nost{n}')]
    prog = pro + [Label("L_around"), Loop(3, att + chk + outn + nxt + [NoTrace(rs + [I('s_branch', 'L_around')])]), Seq(att + chk), Label("L_alast")] + stamp(cfg, 3) + tail_ptrs(cfg) + outl + stamp(cfg, 4)
    if cfg.tail == 'inline':
        cfg.red = fix_store_waits(reduce_body(cfg))
        prog += [I('s_waitcnt', 'vmcnt(0)'), I('s_barrier'), I('s_barrier'), Label('L_reduce')] + cfg.red + [Label('L_done')]
    prog += stamp_flush(cfg) + trace_flush(cfg) + [I('s_endpgm')]
    prog += [NoTrace(rare_code())]
    return prog

def tail_ptrs(cfg):
    if cfg.tail != 'inline': return []
    return [I('s_load_dwordx2', S(SOUT, 2), S(0, 2), 80), I('s_load_dwordx2', S(SDBG, 2), S(0, 2), 88)]
def reduce_body(cfg):
    u = sT2
    o = [I('s_mov_b32', S(SOUT + 2), 16 * 96 * 1152 * 2), I('s_mov_b32', S(SOUT + 3), '0x20000'),
         I('s_lshl_b32', S(u), S(sW), 3), I('s_add_u32', S(u), S(u), S(sG)),
         I('s_mul_i32', S(sT0), S(sGam), 27), I('s_add_u32', S(sT0), S(sT0), S(u)), I('s_lshl_b32', S(sT0), S(sT0), 15),
         I('v_lshlrev_b32', V(vT2), 4, V(vLane))]
    for g in range(8):
        for q in range(4):
            o.append(I('buffer_load_dwordx4', V(32 + 16 * g + 4 * q, 4), V(vT2), S(SWS, 4), S(sT0), mods=f"offen {'offset:%d ' % (1024 * q) if q else ''}{cfg.rdflags}"))
        o.append(I('s_add_u32', S(sT0), S(sT0), 4096))
    o += [I('s_mul_hi_u32', S(64), S(u), 477218589), I('s_mul_i32', S(65), S(64), 9), I('s_sub_u32', S(65), S(u), S(65)),
          I('s_mul_i32', S(66), S(sB), 96), I('s_lshl_b32', S(64), S(64), 5), I('s_add_u32', S(66), S(66), S(64)), I('s_mul_i32', S(66), S(66), 2304),
          I('s_mul_i32', S(67), S(sBlk), 1152), I('s_add_u32', S(66), S(66), S(67)), I('s_lshl_b32', S(65), S(65), 7), I('s_add_u32', S(66), S(66), S(65)),
          I('v_and_b32', V(4), 31, V(vLane)), I('v_mul_u32_u24', V(4), 2304, V(4)), I('v_lshrrev_b32', V(5), 5, V(vLane)), I('v_lshl_add_u32', V(4), V(5), 4, V(4)),
          I('s_mov_b32', S(67), '0xffff0000')]
    acc = 160
    for g in range(8):
        for q in range(4):
            o.append(Wait(vm=31 - 4 * g - q))
            for d in range(4 * q, 4 * q + 4):
                src = V(32 + 16 * g + d)
                if g == 0:
                    o += [I('v_lshlrev_b32', V(acc + 2 * d), 16, src), I('v_and_b32', V(acc + 2 * d + 1), S(67), src)]
                else:
                    o += [I('v_lshlrev_b32', V(6), 16, src), I('v_and_b32', V(7), S(67), src),
                          I('v_add_f32', V(acc + 2 * d), V(acc + 2 * d), V(6)), I('v_add_f32', V(acc + 2 * d + 1), V(acc + 2 * d + 1), V(7))]
            if g == 7:
                pk = 192 + 4 * q
                o += [I('v_cvt_pk_bf16_f32', V(pk + i), V(acc + 8 * q + 2 * i), V(acc + 8 * q + 2 * i + 1)) for i in range(4)]
                o += [I('s_nop', 1), I('v_permlane32_swap_b32', V(pk), V(pk + 2)), I('v_permlane32_swap_b32', V(pk + 1), V(pk + 3)),
                      I('buffer_store_dwordx4', V(pk, 4), V(4), S(SOUT, 4), S(66), mods=f"offen {'offset:%d' % (32 * q) if q else ''}")]
    return o
def fix_store_waits(body):
    n_after = 0; out = []
    ws = [x for x in body if x.kind == 'wait']
    for i, w in enumerate(ws[-4:]): w.vm += i
    return body

def wf(k, u): return WF + 8 * (k & 1) + 4 * u
def rd_wq(k):
    o = []
    for u in range(2):
        for v in range(2):
            o.append(I('ds_read_b64_tr_b16', V(wf(k, u) + 2 * v, 2), V(vWl), mods=f"offset:{(k % WQRING) * KWQ + v * 256 + u * 64}", tag=('wqr', u == 0 and v == 0)))
    return o
def rd_xp(k):
    if k < 28: return []
    s = k - 28
    return [I('ds_read_b128', XF(k, w), V(vX0 if s % 2 == 0 else vX1), mods=f"offset:{w * TILE + 64 * (s >> 1)}") for w in range(3)]
def next_half_salu():
    return [I('s_add_u32', S(sEta), S(sEta), 1), I('s_lshr_b32', S(sT0), S(sEta), 1), I('s_add_u32', S(sT0), S(sT0), S(sB)), I('s_and_b32', S(sT0), S(sT0), 3),
            I('s_lshl_b32', S(sT1), S(sG), 2), I('s_add_u32', S(sT0), S(sT0), S(sT1)), I('s_lshl_b32', S(sT0), S(sT0), 8),
            I('s_xor_b32', S(sT1), S(sEta), S(sRot)), I('s_and_b32', S(sT1), S(sT1), 1), I('s_lshl_b32', S(sT1), S(sT1), 7), I('s_add_u32', S(sWqo), S(sT0), S(sT1)),
            I('s_cmp_ge_u32', S(sEta), 8), I('s_cselect_b32', S(SWQ + 2), 0, S(SWQ + 2))]
def dma_wq(k, cfg):
    o = []
    if k % 36 == 0: o += next_half_salu()
    for i in range(2):
        o += [I('s_mov_b32', 'm0', L_WQ + (k % WQRING) * KWQ + i * PIECE),
              I('buffer_load_dwordx4', V(vDQ0 + i), S(SWQ, 4), S(sWqo), mods=f"offen {cfg.wflags} lds", tag=('wq', i == 0))]
    o += [I('s_add_u32', S(sWqo), S(sWqo), 131072)]
    return o
def q_head(s, cfg, wq_ahead, lg=None):
    if s is None:
        if wq_ahead is None: return [], []
        return [Wait(vm=lambda op, ctx: op['stream'] == 'wq' and op['grp'] <= grp(ctx, 'wqr') + wq_ahead)], []
    return slot_advance(False) + [main_wait(lg, wq_ahead), mbar()], dma_group(step_type(s + 4), cfg, 'Q') + extra_salu(s)
def q_interval(k0, s, cfg):
    head, d = q_head(s, cfg, 3, lg=(0 if s in (0, 13) else None))
    mf = []; gaps = [[] for _ in range(18)]
    for j in range(3):
        k = k0 + j
        for u in range(2):
            for w in range(3):
                acc = V(ACC + 16 * (3 * u + w), 16)
                m = I(MF, acc, V(wf(k, u), 4), XF(k, w), acc if k else '0')
                if u == 0 and w == 0: m = [Wait(lg=[V(wf(k, 0), 8)] + ([XF(k, x) for x in range(3)] if k >= 28 else [])), m]
                mf.append(m)
        spread(gaps, rd_wq((k + 1) % 36) + rd_xp((k + 1) % 36), 6 * j, 6 * j + 3)
    ld = []
    for j in range(3): ld += dma_wq(k0 + LA + j, cfg)
    spread(gaps, ld + d, 0, 17)
    return head + fixup(interleave(mf, gaps))
def q_epilogue(s, cfg):
    head, d = q_head(s, cfg, None)
    o = head + fixup(d) + [I('v_add_u32', V(vQW), S(sHalf), V(vQWl)), I('s_xor_b32', S(sHalf), S(sHalf), 4096), I('s_nop', 9)]
    for u in range(2):
        for w in range(3):
            a = ACC + 16 * (3 * u + w)
            pk = PK
            o += [I('v_mul_f32', V(a + i), S(sC), V(a + i)) for i in range(16)]
            for e in range(2):
                o += [I('v_cvt_pk_bf16_f32', V(pk + 4 * e + k), V(a + 8 * e + 2 * k), V(a + 8 * e + 2 * k + 1)) for k in range(4)]
                o += [I('ds_write_b128', V(vQW), V(pk + 4 * e, 4), mods=f"offset:{w * 8192 + (2 * u + e) * 1024}")]
    return o

def build_q(cfg):
    pro = []
    pro += [
            I('v_lshlrev_b32', V(vT0), 4, V(vLane)), I('v_add_u32', V(vQWl), L_QB, V(vT0)),
            I('v_lshrrev_b32', V(vT0), 3, V(vLane)), I('v_lshlrev_b32', V(vT0), 14, V(vT0)), I('v_and_b32', V(vT1), 7, V(vLane)),
            I('v_lshl_add_u32', V(vDQ0), V(vT1), 4, V(vT0)), I('v_add_u32', V(vDQ1), 8192, V(vDQ0)),
            I('s_lshr_b32', S(sRot), S(sB), 2), I('s_and_b32', S(sRot), S(sRot), 1), I('s_lshl_b32', S(sHalf), S(sRot), 12)]
    assert L_WQ == 0
    a = cfg.nA // 2
    pro += [I('v_subrev_u32', V(vDKa), 3 * a * 1024, V(vDK)), I('v_subrev_u32', V(vDVa), 3 * a * 256, V(vDV))]
    pro += head_setup_kv(0) + [I('s_mov_b32', S(sRd), L_RING),
            I('s_and_b32', S(sT0), S(sB), 3), I('s_lshl_b32', S(sT1), S(sG), 2), I('s_add_u32', S(sT0), S(sT0), S(sT1)), I('s_lshl_b32', S(sPq), S(sT0), 8), I('s_mov_b32', S(sEta), 1)]
    def grp0(j):
        o = []
        for k in (2 * j, 2 * j + 1):
            for hh in range(2):
                for i in range(2):
                    o += [I('s_mov_b32', 'm0', wq0_loc(k) + hh * (KWQ - 128) + i * PIECE), I('s_nop', 0),
                          I('buffer_load_dwordx4', V(vDQ0 + i), S(SWQ, 4), S(sPq), mods=f"offen {'offset:128 ' if hh else ''}{cfg.pflags} lds", tag=('pw', k % 2 == 0 and hh == 0 and i == 0))]
            o += [I('s_add_u32', S(sPq), S(sPq), 131072)]
        return o
    def stepall(st):
        o = []; base = L_RING + (st + 1) * SLOT; ty = step_type(st)
        if 'K' in ty:
            for i in range(8):
                o += [I('s_mov_b32', 'm0', base + i * PIECE), I('s_add_u32', S(sT2), S(sKo), 1024 * i),
                      I('buffer_load_dwordx4', V(vDKa), S(SK, 4), S(sT2), mods=f"offen {cfg.kvflags} lds", tag=('main', i == 0))]
            o += [I('s_add_u32', S(sKo), S(sKo), 8192)]
        if 'V' in ty:
            for i in range(8):
                o += [I('s_mov_b32', 'm0', base + TILE + i * PIECE), I('s_add_u32', S(sT2), S(sVo), 256 * i),
                      I('buffer_load_dwordx4', V(vDVa), S(SV, 4), S(sT2), mods=f"offen {cfg.kvflags} lds", tag=('main', False))]
            o += [I('s_add_u32', S(sVo), S(sVo), 8192)]
        return o
    def wqpre(k0, k1):
        o = []
        for k in range(k0, k1): o += dma_wq(k, cfg)
        return fixup(o)
    for j in range(3): pro += grp0(j)
    pro += [I('s_waitcnt', 'vmcnt(24)'), I('s_barrier')] + stamp(cfg, 2)
    for D in range(4):
        ra, rb = (vX0, vX1) if D % 2 == 0 else (vT0, vT1)
        pro += [I('v_add_u32', V(ra), L_RING + 3 * D * TILE, V(vKl0)), I('v_add_u32', V(rb), L_RING + 3 * D * TILE, V(vKl1))]
        for sx in range(8):
            k = 8 * D + sx
            if k >= 28: continue
            for w in range(3):
                pro.append(I('ds_read_b128', XF(k, w), V(ra if sx % 2 == 0 else rb), mods=f"offset:{w * TILE + 64 * (sx >> 1)}"))
    pro += [I('s_waitcnt', 'lgkmcnt(0)'), I('s_barrier')]
    pro += [I('v_add_u32', V(vX0), L_XP, V(vKl0)), I('v_add_u32', V(vX1), L_XP, V(vKl1))]
    RA = cfg.ra
    for j in range(3, RA): pro += grp0(j)
    late = {18 - RA: lambda: stepall(0) + wqpre(0, 4), 19 - RA: lambda: stepall(1), 20 - RA: lambda: wqpre(4, 7) + stepall(2), 21 - RA: lambda: wqpre(7, LA) + stepall(3)}
    assert 18 - RA >= 8 and 19 - RA >= 10 and 20 - RA >= 12 and 21 - RA >= 14 and 15 - RA >= 6
    for j in range(18):
        if j + RA < 18: pro += grp0(j + RA)
        if j in late: pro += late[j]()
        pro += [Wait(vm=lambda op, ctx: op['stream'] == 'pw' and op['grp'] <= grp(ctx, 'pbar') + 1), pbar()]
    pro += [Wait(vm=lambda op, ctx: op['stream'] == 'wq' and op['grp'] <= 0)] + rd_wq(0) + stamp(cfg, 1)
    rnd = [Label("L_qround")]
    for s in range(12): rnd += q_interval(3 * s, s, cfg)
    rnd += q_epilogue(12, cfg)
    for s in range(13, 25): rnd += q_interval(3 * (s - 13), s, cfg)
    rnd += q_epilogue(25, cfg)
    rnd += [I('s_add_u32', S(sR), S(sR), 1), I('s_cmp_lt_u32', S(sR), 3), I('s_cbranch_scc1', 'L_qround')]
    last = []
    for s in range(26):
        head = slot_advance(False) + [main_wait(0 if s == 0 else None), mbar()]
        last += head
        if s + 4 < 26: last += fixup(dma_group(step_type(s + 4), cfg, 'Q') + extra_salu(s))
    prog = pro + [Loop(3, rnd)] + stamp(cfg, 3) + tail_ptrs(cfg) + last
    if cfg.tail == 'inline':
        prog += [I('s_mov_b32', S(SDBG + 2), 256), I('s_mov_b32', S(SDBG + 3), '0x20000'), I('s_lshl_b32', S(sT0), S(sGam), 3),
                 I('v_mov_b32', V(vT0), 0), I('v_mov_b32', V(vT1), 1), I('s_mov_b32', S(sT1), 0), I('s_waitcnt', 'vmcnt(0)'),
                 I('s_barrier'), I('s_mov_b64', 'exec', 1),
                 I('buffer_atomic_add', V(vT1), V(vT0), S(SDBG, 4), S(sT0), mods="offen"),
                 Label('L_poll'),
                 I('buffer_load_dword', V(vT1), V(vT0), S(SDBG, 4), S(sT0), mods="offen sc1"), I('s_waitcnt', 'vmcnt(0)'),
                 I('v_readfirstlane_b32', S(sT2), V(vT1)), I('s_add_u32', S(sT1), S(sT1), 1),
                 I('s_cmp_ge_u32', S(sT2), 8), I('s_cbranch_scc1', 'L_polled'),
                 I('s_sleep', 1), I('s_cmp_lt_u32', S(sT1), 0x100000), I('s_cbranch_scc1', 'L_poll'),
                 Label('L_polled'), I('s_mov_b64', 'exec', -1), I('s_barrier')] + stamp(cfg, 4)
        prog += [I('s_cmp_lt_u32', S(sG), 3), I('s_cbranch_scc1', 'L_reduce'), NoTrace([I('s_branch', 'L_done')]), Seq(cfg.red)]
    else:
        prog += stamp_flush(cfg) + [I('s_endpgm')]
    return prog

def common_prologue(cfg):
    o = [I('s_cmp_ge_u32', S(2), 256), I('s_cbranch_scc1', 'L_exit'),
         I('s_load_dwordx16', S(56, 16), S(0, 2), 0), I('s_load_dwordx4', S(72, 4), S(0, 2), 64), I('s_load_dwordx2', S(SWS, 2), S(0, 2), 96)]
    o += stamp(cfg, 0)
    o += [I('v_lshrrev_b32', V(vT0), 6, V(0)), I('v_and_b32', V(vLane), 63, V(0)), I('v_readfirstlane_b32', S(sW), V(vT0)),
          I('s_and_b32', S(sT0), S(2), 7), I('s_lshr_b32', S(sBlk), S(sT0), 2), I('s_and_b32', S(sT0), S(sT0), 3),
          I('s_lshr_b32', S(sT1), S(2), 3), I('s_lshr_b32', S(sB), S(sT1), 1), I('s_and_b32', S(sT1), S(sT1), 1),
          I('s_lshl_b32', S(sG), S(sT0), 1), I('s_add_u32', S(sG), S(sG), S(sT1)),
          I('s_lshl_b32', S(sGam), S(sBlk), 4), I('s_add_u32', S(sGam), S(sGam), S(sB)),
          I('s_mov_b32', S(sR), 0), I('s_mov_b32', S(sT), hex(f2u(cfg.thr))), I('s_mov_b32', S(sC), hex(f2u(1.4426950408889634 / 128 ** 0.5))),
          I('s_mul_i32', S(sWK), S(sW), (cfg.nA // 2) * PIECE), I('s_mul_i32', S(sWW), S(sW), cfg.nA * PIECE), I('s_mul_i32', S(sWX), S(sW), 2 * PIECE)]
    o += [I('v_bfe_u32', V(vT0), V(vLane), 2, 3), I('v_mul_u32_u24', V(vKl0), PIECE, V(vT0)),
          I('v_and_b32', V(vT0), 3, V(vLane)), I('v_lshl_add_u32', V(vKl0), V(vT0), 8, V(vKl0)),
          I('v_lshrrev_b32', V(vT1), 5, V(vLane)), I('v_xor_b32', V(vT0), V(vT0), V(vT1)),
          I('v_xor_b32', V(vT1), 2, V(vT0)),
          I('v_lshl_add_u32', V(vKl1), V(vT1), 4, V(vKl0)), I('v_lshl_add_u32', V(vKl0), V(vT0), 4, V(vKl0)),
          I('v_lshrrev_b32', V(vT0), 5, V(vLane)), I('v_bfe_u32', V(vT1), V(vLane), 2, 2), I('v_lshl_add_u32', V(vT0), V(vT0), 2, V(vT1)),
          I('v_mul_u32_u24', V(vVl), PIECE, V(vT0)), I('v_bfe_u32', V(vT0), V(vLane), 4, 1), I('v_lshl_add_u32', V(vVl), V(vT0), 5, V(vVl)),
          I('v_and_b32', V(vT0), 3, V(vLane)), I('v_lshl_add_u32', V(vVl), V(vT0), 3, V(vVl)),
          I('v_lshrrev_b32', V(vT0), 4, V(vLane)), I('v_and_b32', V(vT1), 15, V(vLane)),
          I('v_lshlrev_b32', V(vDV), 11, V(vT0)), I('v_lshl_add_u32', V(vDV), V(vT1), 4, V(vDV)),
          I('v_xor_b32', V(vT1), V(vT1), V(vT0)), I('v_lshlrev_b32', V(vT1), 4, V(vT1)),
          I('v_lshl_add_u32', V(vDK), V(vT0), 8, V(vT1)),
          I('v_mul_u32_u24', V(vT2), 1152, V(vT0)), I('v_add_u32', V(vT2), V(vT2), V(vT1)),
          I('s_mul_i32', S(sT0), S(sW), (cfg.nA // 2) * 1024), I('v_add_u32', V(vDK), S(sT0), V(vDK)),
          I('s_mul_i32', S(sT0), S(sW), (cfg.nA // 2) * 256), I('v_add_u32', V(vDV), S(sT0), V(vDV)),
          I('s_mul_i32', S(sT0), S(sW), 8 * 1152), I('v_add_u32', V(vT2), S(sT0), V(vT2)),
          I('v_lshrrev_b32', V(vT0), 3, V(vLane)), I('v_mul_u32_u24', V(vDW), 18432, V(vT0)), I('v_and_b32', V(vT0), 7, V(vLane)),
          I('v_lshl_add_u32', V(vDW), V(vT0), 4, V(vDW)), I('s_mul_i32', S(sT0), S(sW), cfg.nA * 1152), I('v_add_u32', V(vDW), S(sT0), V(vDW))]
    o += [I('v_and_b32', V(vT0), 3, V(vLane)),
            I('v_and_b32', V(vT1), 1, V(vT0)), I('v_lshlrev_b32', V(vT1), 1, V(vT1)), I('v_lshrrev_b32', V(vT0), 1, V(vT0)), I('v_or_b32', V(vT0), V(vT0), V(vT1)),
            I('v_lshlrev_b32', V(vWl), 3, V(vT0)),
            I('v_bfe_u32', V(vT0), V(vLane), 4, 1), I('v_lshl_add_u32', V(vWl), V(vT0), 5, V(vWl)),
            I('v_bfe_u32', V(vT0), V(vLane), 5, 1), I('v_lshl_add_u32', V(vWl), V(vT0), 9, V(vWl)),
            I('v_bfe_u32', V(vT0), V(vLane), 3, 1), I('v_lshl_add_u32', V(vWl), V(vT0), 7, V(vWl)),
            I('v_bfe_u32', V(vT0), V(vLane), 2, 1), I('v_mul_u32_u24', V(vT0), PIECE, V(vT0)), I('v_add_u32', V(vWl), V(vWl), V(vT0))]
    o += [I('s_waitcnt', 'lgkmcnt(0)'), I('s_cmp_eq_u32', S(sBlk), 0)]
    for srd, ia, ib, size in ((SX, 56, 66, 1769472), (SK, 58, 68, 67108864), (SV, 60, 70, 67108864), (SWQ, 62, 72, 4718592), (SWO, 64, 74, 4718592)):
        o += [I('s_cselect_b32', S(srd), S(ia), S(ib)), I('s_cselect_b32', S(srd + 1), S(ia + 1), S(ib + 1)),
              I('s_mov_b32', S(srd + 2), size), I('s_mov_b32', S(srd + 3), '0x20000')]
    o += [I('s_mov_b32', S(SWS + 2), PART_BYTES), I('s_mov_b32', S(SWS + 3), '0x20000')]
    o += [I('s_mul_i32', S(sT2), S(sB), 110592)]
    ld = []
    for D in range(5):
        for w in range(3):
            col = 256 * D if D < 4 else 896
            base = L_RING + (3 * D + w) * TILE if D < 4 else L_XP + w * TILE
            for i in range(2):
                ld += [I('s_add_u32', 'm0', S(sWX), base + i * PIECE), I('s_add_u32', S(sT1), S(sT2), (32 * w + 4 * i) * 1152 + col),
                       I('buffer_load_dwordx4', V(vT2), S(SX, 4), S(sT1), mods=f"offen {cfg.pflags} lds")]
    o += ld
    return o

import struct
def f2u(x): return struct.unpack('<I', struct.pack('<f', x))[0]

def hook(it, ctx, vq, lq):
    t = getattr(it, 'tag', None)
    if t is None: return None
    if t[0] == 'mbar':
        if any(o['stream'] == 'main' and o['grp'] <= grp(ctx, 'mbar') for o in vq): return "main loads outstanding at barrier"
    if t[0] == 'pbar':
        if any(o['stream'] == 'pw' and o['grp'] <= grp(ctx, 'pbar') for o in vq): return "wq0 loads outstanding at barrier"
    if t[0] == 'wqr':
        if any(o['stream'] == 'wq' and o['grp'] <= grp(ctx, 'wqr') for o in vq): return "wq load outstanding at read"
    if t[0] == 'wq':
        g = grp(ctx, 'wq') - WQRING
        if grp(ctx, 'wqr') < g or any(o['stream'] == 'wqr' and o['grp'] <= g for o in lq): return "wq ring overwrite before read done"
    if t[0] == 'main' and t[1]:
        if grp(ctx, 'main') - NS + 1 > grp(ctx, 'mbar') and grp(ctx, 'main') >= NS: return "main ring overwrite too early"
    return None

def build_reduce(cfg):
    o = [I('s_cmp_ge_u32', S(2), 432), I('s_cbranch_scc1', 'L_rexit'),
         I('s_load_dwordx2', S(4, 2), S(0, 2), 96), I('s_load_dwordx2', S(8, 2), S(0, 2), 80)] + ([I('s_memrealtime', S(24, 2))] if cfg.stamps else []) + [
         I('v_lshrrev_b32', V(1), 6, V(0)), I('v_and_b32', V(2), 63, V(0)), I('v_readfirstlane_b32', S(3), V(1)),
         I('s_lshl_b32', S(12), S(2), 2), I('s_add_u32', S(12), S(12), S(3)),
         I('s_and_b32', S(13), S(12), 1), I('s_lshr_b32', S(12), S(12), 1),
         I('s_lshl_b32', S(14), S(12), 15), I('s_lshl_b32', S(15), S(13), 11), I('s_add_u32', S(14), S(14), S(15)),
         I('v_lshlrev_b32', V(3), 4, V(2)),
         I('s_mov_b32', S(6), PART_BYTES), I('s_mov_b32', S(7), '0x20000'), I('s_mov_b32', S(10), 16 * 96 * 1152 * 2), I('s_mov_b32', S(11), '0x20000'),
         I('s_waitcnt', 'lgkmcnt(0)')]
    for g in range(8):
        for q in range(2):
            o.append(I('buffer_load_dwordx4', V(16 + 8 * g + 4 * q, 4), V(3), S(4, 4), S(14), mods=f"offen {'offset:1024 ' if q else ''}{cfg.rdflags}"))
        o.append(I('s_add_u32', S(14), S(14), 4096))
    o += [I('s_mul_hi_u32', S(16), S(12), 159072863), I('s_mul_i32', S(17), S(16), 27), I('s_sub_u32', S(17), S(12), S(17)),
          I('s_mul_hi_u32', S(18), S(17), 477218589), I('s_mul_i32', S(19), S(18), 9), I('s_sub_u32', S(19), S(17), S(19)),
          I('s_lshr_b32', S(20), S(16), 4), I('s_and_b32', S(21), S(16), 15),
          I('s_mul_i32', S(21), S(21), 96), I('s_lshl_b32', S(18), S(18), 5), I('s_add_u32', S(21), S(21), S(18)), I('s_mul_i32', S(21), S(21), 2304),
          I('s_mul_i32', S(20), S(20), 1152), I('s_add_u32', S(21), S(21), S(20)), I('s_lshl_b32', S(19), S(19), 7), I('s_add_u32', S(21), S(21), S(19)),
          I('s_lshl_b32', S(13), S(13), 6), I('s_add_u32', S(21), S(21), S(13)),
          I('v_and_b32', V(4), 31, V(2)), I('v_mul_u32_u24', V(4), 2304, V(4)), I('v_lshrrev_b32', V(5), 5, V(2)), I('v_lshl_add_u32', V(4), V(5), 4, V(4)),
          I('s_mov_b32', S(22), '0xffff0000')]
    acc = 80
    for g in range(8):
        o.append(Wait(vm=14 - 2 * g))
        for d in range(8):
            src = V(16 + 8 * g + d)
            if g == 0:
                o += [I('v_lshlrev_b32', V(acc + 2 * d), 16, src), I('v_and_b32', V(acc + 2 * d + 1), S(22), src)]
            else:
                o += [I('v_lshlrev_b32', V(6), 16, src), I('v_and_b32', V(7), S(22), src),
                      I('v_add_f32', V(acc + 2 * d), V(acc + 2 * d), V(6)), I('v_add_f32', V(acc + 2 * d + 1), V(acc + 2 * d + 1), V(7))]
    for d in range(8): o.append(I('v_cvt_pk_bf16_f32', V(8 + d), V(acc + 2 * d), V(acc + 2 * d + 1)))
    o += [I('s_nop', 1)]
    for q in range(2):
        o += [I('v_permlane32_swap_b32', V(8 + 4 * q), V(8 + 4 * q + 2)), I('v_permlane32_swap_b32', V(8 + 4 * q + 1), V(8 + 4 * q + 3))]
    for q in range(2):
        o.append(I('buffer_store_dwordx4', V(8 + 4 * q, 4), V(4), S(8, 4), S(21), mods=f"offen {'offset:32' if q else ''}"))
    if cfg.stamps:
        o += [I('s_waitcnt', 'vmcnt(0)'), I('s_memrealtime', S(26, 2)), I('s_waitcnt', 'lgkmcnt(0)'), I('s_mov_b32', S(6), STAMP_OFF + 65536 + 32768),
              I('s_lshl_b32', S(12), S(2), 2), I('s_add_u32', S(12), S(12), S(3)), I('s_lshl_b32', S(12), S(12), 4), I('s_add_u32', S(12), S(12), STAMP_OFF + 65536),
              I('v_mov_b32', V(3), 0), I('s_mov_b64', 'exec', 1)] + [I('v_mov_b32', V(16 + i), S(24 + i)) for i in range(4)] + [I('buffer_store_dwordx4', V(16, 4), V(3), S(4, 4), S(12), mods="offen")]
    o += [Label('L_rexit'), I('s_endpgm')]
    return o

def strip_lines(t, cfg):
    o = []; inq = False
    for l in t:
        w = l.split()
        op = w[0] if w else ''
        if op == 'L_qround:': inq = True
        if 'qmfma' in cfg.strip and inq and op.startswith(('v_mfma', 'ds_read')): l = "    s_nop 0\n    s_nop 0"
        if 'qmfma0' in cfg.strip and inq and op.startswith(('v_mfma', 'ds_read', 'v_mul', 'v_cvt')): continue
        if 'dma' in cfg.strip and op.startswith('buffer_load') and 'lds' in w: l = "    s_nop 0\n    s_nop 0"
        if 'mfma' in cfg.strip and op.startswith('v_mfma'): l = "    s_nop 0\n    s_nop 0"
        if 'exp' in cfg.strip and op.startswith('v_exp'): l = "    s_nop 0"
        if 'ds' in cfg.strip and op.startswith('ds_read'): l = "    s_nop 0\n    s_nop 0"
        if 'bar' in cfg.strip and op.startswith('s_barrier'): l = "    s_nop 0"
        if 'rare' in cfg.strip and op.startswith('s_cbranch_vccnz'): l = "    s_nop 0"
        o.append(l)
    return o

def generate(path, cfg):
    global rare_sites
    rare_sites = []
    com = common_prologue(cfg)
    pa = build_a(cfg); pq = build_q(cfg); pr = build_reduce(cfg)
    errs = []
    for nm, prog in (("A", com + pa), ("Q", com + pq), ("R", pr)):
        tr = []; flatten(prog, tr); resolve_waits(tr)
        errs += check_trace(tr, nm, hook)
        print(nm, "trace len", len(tr), "est cycles", cost(tr), "barriers", sum(1 for x in tr if x.kind == 'barrier'), file=sys.stderr)
    for par in range(2):
        errs += check_trace([I(MF, V(O + 48, 16), V(32, 4), V(64, 4), V(O + 48, 16))] + rare_body(par) + [I(MF, V(SB[1 - par], 16), V(32, 4), V(QF, 4), V(NEGM, 16))], "rare")
    if errs:
        for e in errs[:40]: print("ERR", e, file=sys.stderr)
        raise SystemExit(f"{len(errs)} errors")
    a = Asm()
    inline = cfg.tail == 'inline'
    mainname = KNAME if inline else "attn_main_kernel"
    file_begin(a, [(mainname, 256, 256, L_END)] + ([] if inline else [("attn_reduce_kernel", 432, 256, 0)]))
    kernel_begin(a, mainname)
    t = []
    emit_text(com, t)
    emit_text([I('s_cmp_eq_u32', S(sW), 3), I('s_cbranch_scc1', 'L_qwave')], t)
    emit_text(pa, t)
    t.append("L_qwave:")
    emit_text(pq, t)
    t.append("L_exit:\n    s_endpgm")
    t = strip_lines(t, cfg)
    a("\n".join(t))
    if not inline:
        kernel_begin(a, "attn_reduce_kernel")
        t = []; emit_text(pr, t); a("\n".join(t))
    kernel_desc(a, mainname, 512, 256)
    if not inline: kernel_desc(a, "attn_reduce_kernel", 96, 96, 32)
    open(path, "w").write(a.text())
    import subprocess
    r = subprocess.run(["clang", "-x", "assembler", "-target", "amdgcn-amd-amdhsa", "-mcpu=gfx950", "-c", path, "-o", "chk.o"], capture_output=True, text=True)
    if r.returncode: raise SystemExit(r.stderr[:2000])

if __name__ == "__main__":
    ap = argparse.ArgumentParser()
    ap.add_argument("out")
    ap.add_argument("--stamps", action="store_true")
    ap.add_argument("--kvflags", default="nt"); ap.add_argument("--wflags", default=""); ap.add_argument("--stflags", default=""); ap.add_argument("--rdflags", default="")
    ap.add_argument("--thr", type=float, default=10.0)
    ap.add_argument("--cyc", action="store_true"); ap.add_argument("--trace", type=int, default=0); ap.add_argument("--pflags", default=None)
    ap.add_argument("--ra", type=int, default=5); ap.add_argument("--tail", default="kernel")
    ap.add_argument("--nA", type=int, default=4); ap.add_argument("--spreadA", action="store_true")
    ap.add_argument("--strip", default="", help="comma list of kinds to drop from steady state for diagnosis: dma,mfma,valu,ds")
    ap.add_argument("--pf", action="store_true", help="prefetch code into L2")
    x = ap.parse_args()
    cfg = Cfg(); cfg.stamps = x.stamps; cfg.kvflags = x.kvflags; cfg.wflags = x.wflags; cfg.stflags = x.stflags; cfg.rdflags = x.rdflags; cfg.thr = x.thr
    cfg.clk = 's_memtime' if x.cyc else 's_memrealtime'; cfg.strip = x.strip.split(','); cfg.pf = x.pf; cfg.pflags = x.wflags if x.pflags is None else x.pflags; cfg.ra = x.ra; cfg.tail = x.tail; cfg.trace = x.trace; cfg.nA = x.nA; cfg.spreadA = x.spreadA
    generate(x.out, cfg)
```

```python
import sys, argparse, struct
from asmlib import *
from fw import *

I = Ins
NG = 10; PIECE = 1088; TILE = 8704
L_WQ = 0; L_RING = 26112; L_QB = L_RING + NG * TILE; L_XP = L_QB + 24576; L_END = L_XP + 26112
assert L_END == 163840
KWQ = 2176; WQRING = 12
PART_BYTES = 256 * 27 * 4096
FLAG_OFF = PART_BYTES; WS_BYTES = PART_BYTES + 256 * 256
WSIZE = 4718592
STAMP_OFF = 64 * 1024 * 1024
MF = 'v_mfma_f32_32x32x16_bf16'
sW = 3; SK = 4; SV = 8; SWO = 12; SWQ = 16; SWS = 20; SX = 24
sR = 28; sLC = 29; sRET = 30
sKo = 32; sVo = 33; sWoo = 34; sWqo = 35; sWK = 40; sWX = 42
sB = 43; sG = 44; sBlk = 45; sT = 46; sC = 47; sT0 = 48; sT1 = 49; sT2 = 50; sEta = 51; sRot = 52; sHalf = 53; sSt = 54; sGam = 55
SOUT = 56; SDBG = 60; sPq = 64
sST = 80
vDK = 7; vDV = 8; vDW = 9; vT0 = 10
vKa = (1, 2); vVa = 3; vKb = (4, 5); vVb = 6
vL0 = 11; vL1 = 12; vMx = 13; vQl = 0; vTr0 = 14; vTr1 = 15
FB = 16; NEGM = 48; SB = (64, 80); QF = 96; OB = 128; O = 160
def OUT(t): return A(16 * t, 16) if t < 16 else V(224 + 16 * (t - 16), 16)
pLane = 100; pKl0 = 101; pKl1 = 102; pVl = 103; pWl = 104; pX = 105; pT1 = 106; pT2 = 107; pA = 108; pB = 109; pC = 110; pD = 111
vWl = 1; vX0 = 2; vX1 = 3; vQWl = 4; vQW = 5; vDQ0 = 11; vDQ1 = 12; vDKa = 13; vDVa = 14
WF = 16; XT = 40; PK = 64; ACC = 72; XR = 168
def XF(k, w):
    if k >= 28: return V(XT + 12 * (k & 1) + 4 * w, 4)
    n = 3 * k + w
    return A(4 * n, 4) if n < 64 else V(XR + 4 * (n - 64), 4)

def f2u(x): return struct.unpack('<I', struct.pack('<f', x))[0]
class Cfg: pass

def step_parts(s):
    if s == 0: return [('K', 0), ('W', 0)]
    if s <= 15: return [('K', s), ('W', s), ('V', s - 1)]
    if s == 16: return [('W', 16), ('V', 15)]
    if s == 17: return [('W', 17)]
    return [('F', 3 * (s - 18) + e) for e in range(3)]
def start(s): return sum(len(step_parts(x)) for x in range(s))
SEQ_N = [g for s in range(18) for g in step_parts(s)]
SEQ_L = [g for s in range(24) for g in step_parts(s)]
def gran(idx, last):
    if last: return SEQ_L[idx] if idx < len(SEQ_L) else None
    return SEQ_N[idx % 50]
def issue_range(s):
    hi = start(s) + NG - 1
    n = len(step_parts(s - 1)) if s else 1
    return range(hi - n + 1, hi + 1)

def head_of(plus, dst):
    o = [I('s_add_u32', S(sT0), S(sR), S(sB))]
    if plus: o.append(I('s_add_u32', S(sT0), S(sT0), plus))
    return o + [I('s_and_b32', S(sT0), S(sT0), 3), I('s_lshl_b32', S(sT1), S(sG), 2), I('s_add_u32', S(dst), S(sT0), S(sT1))]
def setup_kv(plus):
    return head_of(plus, sT0) + [I('s_lshl_b32', S(sT1), S(sB), 5), I('s_add_u32', S(sT0), S(sT0), S(sT1)), I('s_lshl_b32', S(sKo), S(sT0), 17), I('s_mov_b32', S(sVo), S(sKo))]
def setup_wo():
    return head_of(0, sT0) + [I('s_mul_i32', S(sWoo), S(sT0), 147456), I('s_mov_b32', S(SWO + 2), WSIZE)]

def dma_gran(idx, last, cfg, role):
    g = gran(idx, last)
    if g is None: return []
    ty, n = g
    a = cfg.a
    cnt = a if role == 'A' else 8 - 3 * a
    o = []
    if idx >= 50 and g == ('K', 0): o += setup_kv(1)
    if idx >= 50 and g in (('W', 0), ('F', 0)): o += setup_wo()
    voff, srd, soff, step, fl = {'K': (vDK, SK, sKo, 1024, cfg.kvflags), 'V': (vDV, SV, sVo, 256, cfg.kvflags)}.get(ty, (vDW, SWO, sWoo, 1152, cfg.woflags if ty == 'W' else cfg.fflags))
    base = L_RING + (idx % NG) * TILE
    for i in range(cnt):
        off = step * i; so = soff
        if off > 4095:
            o += [I('s_add_u32', 'm0', S(sWK), base + i * PIECE), I('s_add_u32', S(sT2), S(soff), off)]; so = sT2; off = 0
        else:
            o += [I('s_add_u32', 'm0', S(sWK), base + i * PIECE - off)]
        o.append(I('buffer_load_dwordx4', V(voff), S(srd, 4), S(so), mods=f"offen {'offset:%d ' % off if off else ''}{fl} lds", tag=('main', i == 0)))
    if cnt == 0: o.append(Mark(('main', True)))
    if ty in 'KV': o.append(I('s_add_u32', S(soff), S(soff), 8192))
    elif n % 2 == 0: o.append(I('s_add_u32', S(soff), S(soff), 73728))
    else: o.append(I('s_sub_u32', S(soff), S(soff), 73600))
    return o
def dma_after(s, last, cfg, role):
    o = []
    for idx in issue_range(s): o += dma_gran(idx, last, cfg, role)
    return o

def fixup(seq):
    out = []
    for it in seq:
        if it.kind == 'dma' and out and out[-1].kind == 'salu' and 'm0' in out[-1].writes:
            m = out[-1]
            p = out[-2] if len(out) > 1 else None
            if p is not None and p.kind in ('valu', 'trans', 'dsr', 'dsw', 'mfma', 'salu') and not (set(p.writes) & set(m.reads)) and 'm0' not in p.writes and 'm0' not in p.reads and not (p.kind == 'salu' and ('scc' in p.writes or p.op.startswith('s_cselect'))):
                out[-2], out[-1] = m, p
            else:
                out.append(I('s_nop', 0))
        out.append(it)
    return out
def front(gaps):
    for g in gaps:
        for i, it in enumerate(g):
            if it.kind in ('valu', 'trans'): continue
            if i and it.kind in ('salu', 'dsr', 'dma', 'wait'): g.insert(0, g.pop(i))
            break
    return gaps
def merge(a, b, ra=1, rb=1):
    a = list(a); b = list(b); o = []
    while a or b:
        o += a[:ra]; a = a[ra:]
        o += b[:rb]; b = b[rb:]
    return o

def barrier(s, lg, wq_ahead=None):
    def pred(op, ctx):
        if op['stream'] == 'main' and op['grp'] <= grp(ctx, 'need'): return True
        return False
    nfree = len(step_parts(s - 1)) if s else 1
    return [Mark(('need', True)) for _ in step_parts(s)] + [Wait(lg=lg, vm=pred), I('s_barrier', tag=('mbar', True))] + [Mark(('free', True)) for _ in range(nfree)]

def stamp(cfg, n): return [I(cfg.clk, S(sST + 2 * n, 2))] if cfg.stamps else []
def trace_init(cfg):
    return [I('s_mov_b32', S(76), 0), I('s_mov_b32', S(77), 0), I('v_mov_b32', V(vTr0), 0), I('v_mov_b32', V(vTr1), 0), I('s_memrealtime', S(96, 2)), I('s_memtime', S(98, 2)), I('s_waitcnt', 'lgkmcnt(0)')]
def trace_pt(cfg):
    if not cfg.trace: return []
    return [I('s_mov_b32', 'm0', S(77)), I('s_nop', 0), I('v_writelane_b32', V(vTr0), S(96), 'm0'), I('v_writelane_b32', V(vTr1), S(98), 'm0'), I('s_memrealtime', S(96, 2)), I('s_memtime', S(98, 2)),
            I('s_add_u32', S(76), S(76), 1), I('s_lshr_b32', S(77), S(76), 1) if cfg.trace == 2 else I('s_min_u32', S(77), S(76), 63)]
def lane_id(dst): return [I('v_mbcnt_lo_u32_b32', V(dst), -1, 0), I('v_mbcnt_hi_u32_b32', V(dst), -1, V(dst))]
def flush(cfg):
    o = []
    if cfg.trace:
        o += [I('s_lshl_b32', S(sT0), S(2), 2), I('s_add_u32', S(sT0), S(sT0), S(sW)), I('s_lshl_b32', S(sT0), S(sT0), 9), I('s_add_u32', S(sT0), S(sT0), STAMP_OFF + 131072),
              I('s_mov_b32', S(SWS + 2), STAMP_OFF + 131072 + 524288)] + lane_id(vT0) + [I('v_lshlrev_b32', V(vT0), 2, V(vT0)),
              I('buffer_store_dword', V(vTr0), V(vT0), S(SWS, 4), S(sT0), mods="offen"), I('buffer_store_dword', V(vTr1), V(vT0), S(SWS, 4), S(sT0), mods="offen offset:256")]
    if cfg.stamps:
        o += [I('s_waitcnt', 'vmcnt(0)'), I(cfg.clk, S(sST + 14, 2)), I('s_waitcnt', 'vmcnt(0) lgkmcnt(0)'),
             I('s_lshl_b32', S(sT0), S(2), 2), I('s_add_u32', S(sT0), S(sT0), S(sW)), I('s_lshl_b32', S(sT0), S(sT0), 6),
             I('s_add_u32', S(sT0), S(sT0), STAMP_OFF), I('s_mov_b32', S(SWS + 2), STAMP_OFF + 65536), I('v_mov_b32', V(vT0), 0), I('s_mov_b64', 'exec', 1)]
        for q in range(4):
            o += [I('v_mov_b32', V(32 + 4 * q + i), S(sST + 4 * q + i)) for i in range(4)]
            o += [I('buffer_store_dwordx4', V(32 + 4 * q, 4), V(vT0), S(SWS, 4), S(sT0), mods=f"offen offset:{16 * q}")]
    return o

def fb(n): return FB + 4 * (n % 8)
def FBr(n): return V(fb(n), 4)
def rd_frag(idx, ty, i, n):
    pos = idx % NG
    hi = pos >= 5
    base = (pos - 5 * hi) * TILE
    if ty == 'K':
        return [I('ds_read_b128', V(fb(n), 4), V((vKb if hi else vKa)[i & 1]), mods=f"offset:{base + 64 * (i >> 1)}")]
    vv = V(vVb if hi else vVa)
    if ty == 'V':
        tp, dt = i // 4, i % 4
        return [I('ds_read_b64_tr_b16', V(fb(n) + 2 * u, 2), vv, mods=f"offset:{base + (2 * tp + u) * 256 + dt * 64}") for u in range(2)]
    t, u = i // 2, i % 2
    return [I('ds_read_b64_tr_b16', V(fb(n) + 2 * v, 2), vv, mods=f"offset:{base + (2 * t + v) * 128 + u * 64}") for v in range(2)]
def rd_Q(i): return [I('ds_read_b128', V(QF + 4 * i, 4), V(vQl), mods=f"offset:{1024 * i}")]
def mf_part(g, i, n):
    ty, x = g
    if ty == 'K':
        s = V(SB[x % 2], 16)
        return I(MF, s, FBr(n), V(QF + 4 * i, 4), s if i else ('0' if x == 0 else V(NEGM, 16)))
    if ty == 'V':
        tp, dt = i // 4, i % 4
        d = V(O + 16 * dt, 16)
        return I(MF, d, FBr(n), V(SB[x % 2] + 4 * tp, 4), '0' if (x == 0 and tp == 0) else d)
    t, u = i // 2, i % 2
    d = OUT(2 * (x // 2) + u)
    return I(MF, d, FBr(n), V(OB + 16 * (x % 2) + 4 * t, 4), d)

def softmax_list(g):
    s = SB[g % 2]; o = []
    for k in range(8):
        o += [I('v_exp_f32', V(s + 2 * k), V(s + 2 * k)), I('v_exp_f32', V(s + 2 * k + 1), V(s + 2 * k + 1)),
              I('v_add_f32', V(vL0), V(vL0), V(s + 2 * k)), I('v_add_f32', V(vL1), V(vL1), V(s + 2 * k + 1)),
              I('v_cvt_pk_bf16_f32', V(s + k), V(s + 2 * k), V(s + 2 * k + 1))]
    return o
def max_list(g):
    s = SB[g % 2]
    o = [I('v_max3_f32', V(vMx), V(s), V(s + 1), V(s + 2))]
    for i in range(3, 15, 2): o.append(I('v_max3_f32', V(vMx), V(vMx), V(s + i), V(s + i + 1)))
    o.append(I('v_max_f32', V(vMx), V(vMx), V(s + 15)))
    return o
def norm_tile(dt, src, dst):
    o = [I('v_mul_f32', V(O + 16 * dt + i), src, V(O + 16 * dt + i)) for i in range(16)]
    return o + [I('v_cvt_pk_bf16_f32', V(dst + 8 * dt + k), V(O + 16 * dt + 2 * k), V(O + 16 * dt + 2 * k + 1)) for k in range(8)]

def store_tile(t, cfg):
    tmp = O + 32 * (t & 1); pk = tmp + 16; q0 = 2 * (t & 1)
    o = []
    for k in range(8):
        if t < 16:
            o += [I('v_accvgpr_read_b32', V(tmp + 2 * k), A(16 * t + 2 * k)), I('v_accvgpr_read_b32', V(tmp + 2 * k + 1), A(16 * t + 2 * k + 1))]
            o += [I('v_cvt_pk_bf16_f32', V(pk + k), V(tmp + 2 * k), V(tmp + 2 * k + 1))]
        else:
            b = 224 + 16 * (t - 16)
            o += [I('v_cvt_pk_bf16_f32', V(pk + k), V(b + 2 * k), V(b + 2 * k + 1))]
        if k % 4 == 3:
            q = q0 + k // 4
            o.append(I('buffer_store_dwordx4', V(pk + k - 3, 4), V(vQl), S(SWS, 4), S(sSt), mods=f"offen {'offset:%d ' % (1024 * q) if q else ''}{cfg.stflags}"))
    if t & 1: o.append(I('s_add_u32', S(sSt), S(sSt), 32768))
    return o

rare_sites = []
def split_dma(d, frac):
    idx = [i for i, x in enumerate(d) if x.kind == 'dma']
    if len(idx) < 2: return d, []
    n = max(1, int(len(idx) * frac + 0.5))
    c = idx[n - 1] + 1
    return d[:c], d[c:]

def a_step(s, cfg, last):
    parts = step_parts(s); L = 8 * len(parts); st = start(s)
    final = last and s == 23
    nxt = s + 1 if (last or s < 17) else 0
    mf = [mf_part(parts[n // 8], n % 8, n) for n in range(L)]
    gaps = [[] for _ in range(L)]
    for n in range(8, L): gaps[n - 8] += rd_frag(st + n // 8, parts[n // 8][0], n % 8, n)
    b = L - 6
    FR = cfg.frac
    head = split_dma(dma_after(s, last, cfg, 'A'), FR)[1]
    tail = []
    if not final:
        gaps[b] += barrier(nxt, 0) + trace_pt(cfg)
        np_ = step_parts(nxt)[0]
        nst = start(s + 1)
        for i in range(8):
            gaps[b + max(0, i - 2)] += rd_frag(nst, np_[0], i, i) + (rd_Q(i) if nxt == 0 else [])
        tail = split_dma(dma_after(nxt, last, cfg, 'A') if nxt else dma_after(18, False, cfg, 'A'), FR)[0]
    spread_even(gaps, head, 0, b - 1)
    spread_even(gaps, tail, b, L - 1)
    post = []; pre = []
    name = f"s{s}{'l' if last and s >= 13 else ''}"
    if s == 0:
        w = [I('v_mov_b32', V(vL0), 0), I('v_mov_b32', V(vL1), 0)]
        spread(gaps, w, 0, 3)
        x = max_list(0) + [I('v_mov_b32', V(vT0), V(vMx)), I('s_nop', 1), I('v_permlane32_swap_b32', V(vT0), V(vMx)), I('v_max_f32', V(vMx), V(vMx), V(vT0))]
        x += merge([I('v_sub_f32', V(NEGM + i), 0, V(vMx)) for i in range(16)], [I('v_sub_f32', V(SB[0] + i), V(SB[0] + i), V(vMx)) for i in range(16)])
        k = 30
        spread(gaps, x[:k], 10, 15); post = x[k:] + [I('s_nop', 0)]
    elif s <= 15:
        sm = softmax_list(s - 1)
        spread(gaps, sm[:20], 0, 8); spread(gaps, sm[20:], 9, 17)
        spread(gaps, max_list(s) + [I('v_cmp_lt_f32', 'vcc', S(sT), V(vMx))], 18, 23)
        post = [I('s_cbranch_vccnz', f"L_rare_{name}"), Label(f"L_back_{name}")]
        rare_sites.append((name, s % 2))
    elif s == 16:
        sm = softmax_list(15)
        spread(gaps, sm[:20], 0, 5); spread(gaps, sm[20:], 6, 10)
        red = [I('v_add_f32', V(vL0), V(vL0), V(vL1)), I('v_mov_b32', V(vT0), V(vL0)), I('s_nop', 1),
               I('v_permlane32_swap_b32', V(vT0), V(vL0)), I('v_add_f32', V(vL0), V(vL0), V(vT0)), I('v_rcp_f32', V(vL0), V(vL0))]
        spread(gaps, red, 12, 15)
    elif s == 17:
        x = norm_tile(0, V(vL0), OB) + norm_tile(1, V(vL0), OB)
        y = norm_tile(2, V(vL0), OB) + norm_tile(3, V(vL0), OB)
        spread(gaps, x, 1, 7)
        post = y + [I('s_nop', 0)]
        if last: post = lane_id(vQl) + [I('v_lshlrev_b32', V(vQl), 4, V(vQl))] + post
    else:
        for e, (ty, x) in enumerate(parts):
            xp = x - 1
            if xp >= 1 and xp % 2 == 1:
                p = xp // 2
                spread(gaps, store_tile(2 * p, cfg) + store_tile(2 * p + 1, cfg), 8 * e + 2, min(8 * e + 13, L - 1))
        if final: post = [I('s_nop', 11)] + store_tile(16, cfg) + store_tile(17, cfg)
    front(gaps)
    for n in range(0, L, 4):
        if n > b and not final: break
        cov = [FBr(x) for x in range(n, min(n + 4, (b + 1) if (n + 4 > b + 1 and not final) else n + 4))]
        if s == 0 and n < 8: cov += [V(QF + 4 * x, 4) for x in range(n, n + 4)]
        mf[n] = [Wait(lg=cov), mf[n]]
    return pre + fixup(interleave(mf, gaps)) + post

def rare_body(par):
    s = SB[par]
    o = [I('s_nop', 11), I('v_mov_b32', V(vT0), V(vMx)), I('s_nop', 1), I('v_permlane32_swap_b32', V(vT0), V(vMx)),
         I('v_max3_f32', V(vMx), V(vMx), V(vT0), 0), I('v_sub_f32', V(vT0), 0, V(vMx)), I('v_exp_f32', V(vT0), V(vT0))]
    o += [I('v_sub_f32', V(s + i), V(s + i), V(vMx)) for i in range(16)]
    o += [I('v_sub_f32', V(NEGM + i), V(NEGM + i), V(vMx)) for i in range(16)]
    o += [I('v_mul_f32', V(vL0), V(vL0), V(vT0)), I('v_mul_f32', V(vL1), V(vL1), V(vT0))]
    o += [I('v_mul_f32', V(O + i), V(O + i), V(vT0)) for i in range(64)]
    o += [I('s_nop', 1)]
    return o
def rare_code():
    o = []
    for name, par in rare_sites:
        o += [Label(f"L_rare_{name}"), I('s_call_b64', S(sRET, 2), f"L_rare_sub{par}"), I('s_branch', f"L_back_{name}")]
    for par in range(2):
        o += [Label(f"L_rare_sub{par}")] + rare_body(par) + [I('s_setpc_b64', S(sRET, 2))]
    return o

def wq0_loc(k):
    if k < 6: return L_WQ + 2 * KWQ * k
    if k < 26: return L_RING + 2 * KWQ * (k - 6)
    if k < 31: return L_QB + 2 * KWQ * (k - 26)
    if k < 33: return L_RING + 1 * TILE + 2 * KWQ * (k - 31)
    if k < 35: return L_RING + 3 * TILE + 2 * KWQ * (k - 33)
    return L_RING + 6 * TILE
def pbar(): return I('s_barrier', tag=('pbar', True))

def a_prologue(cfg):
    pro = []
    w = sW
    tp = lambda: trace_pt(cfg) if cfg.trace == 1 else []
    pro += [I('v_lshlrev_b32', V(pT1), 4, V(pLane)), I('s_lshl_b32', S(sT0), S(w), 13), I('s_add_u32', S(sT0), S(sT0), L_QB),
            I('v_add_u32', V(vQl), S(sT0), V(pT1)),
            I('s_mul_i32', S(sT0), S(sGam), 27), I('s_mul_i32', S(sT1), S(w), 9), I('s_add_u32', S(sT0), S(sT0), S(sT1)),
            I('s_lshl_b32', S(sT0), S(sT0), 3), I('s_add_u32', S(sT0), S(sT0), S(sG)), I('s_lshl_b32', S(sSt), S(sT0), 12)]
    if cfg.pf:
        pro += [I('s_getpc_b64', S(68, 2)), Label('L_pcref'), I('s_mov_b32', S(70), 'L_exit-L_pcref'), I('s_mov_b32', S(71), '0x20000'),
                I('s_lshr_b32', S(sT0), S(2), 3), I('s_mul_i32', S(sT0), S(sT0), 3), I('s_add_u32', S(sT0), S(sT0), S(w)), I('s_lshl_b32', S(sT0), S(sT0), 10),
                I('buffer_load_dwordx4', V(FB, 4), V(pT1), S(68, 4), S(sT0), mods="offen")]
    if cfg.trace == 1: pro += trace_init(cfg)
    pro += setup_kv(0) + [I('s_add_u32', S(sKo), S(sKo), 4 * 8192), I('s_add_u32', S(sVo), S(sVo), 2 * 8192), I('s_mov_b32', S(sWoo), 73728)]
    pro += [Mark(('main', True)) for _ in range(9)]
    pro += [I('v_add_u32', V(vKa[0]), L_RING, V(pKl0)), I('v_add_u32', V(vKa[1]), L_RING, V(pKl1)), I('v_add_u32', V(vVa), L_RING, V(pVl)),
            I('v_add_u32', V(vKb[0]), L_RING + 5 * TILE, V(pKl0)), I('v_add_u32', V(vKb[1]), L_RING + 5 * TILE, V(pKl1)), I('v_add_u32', V(vVb), L_RING + 5 * TILE, V(pVl))]
    pro += [I('v_accvgpr_write_b32', A(i), 0) for i in range(144, 256)] + [I('v_mov_b32', V(224 + i), 0) for i in range(32)] + [I('v_mov_b32', V(OB + i), 0) for i in range(32)]
    pro += [I('s_mul_i32', S(sT1), S(w), TILE)]
    pro += [I('s_waitcnt', f"vmcnt({1 if cfg.pf else 0})"), I('s_barrier')] + stamp(cfg, 2) + tp()
    for D in range(5):
        base = L_RING + 3 * D * TILE if D < 4 else L_XP
        ra, rb = (pA, pB) if D % 2 == 0 else (pC, pD)
        pro += [I('s_add_u32', S(sT0), S(sT1), base), I('v_add_u32', V(ra), S(sT0), V(pKl0)), I('v_add_u32', V(rb), S(sT0), V(pKl1))]
        for sx in range(8):
            k = 8 * D + sx if D < 4 else 28 + sx
            if D < 4 and k >= 28: continue
            pro.append(I('ds_read_b128', A(4 * k, 4), V(ra if sx % 2 == 0 else rb), mods=f"offset:{64 * (sx >> 1)}"))
    pro += [I('s_waitcnt', 'vmcnt(0) lgkmcnt(0)'), I('s_barrier')] + tp() + [I('s_waitcnt', 'lgkmcnt(0)')]
    SEG = 61440
    pro += [I('v_add_u32', V(pA), SEG, V(pWl)), I('v_add_u32', V(pB), 2 * SEG, V(pWl))]
    bank = lambda j, n: (FB if j % 2 == 0 else NEGM) + 4 * n
    def rd0(j, n):
        k, dt = 2 * j + n // 4, n % 4
        loc = wq0_loc(k); sg = loc // SEG
        return [I('ds_read_b64_tr_b16', V(bank(j, n) + 2 * v, 2), V((pWl, pA, pB)[sg]), mods=f"offset:{loc - sg * SEG + (dt >> 1) * KWQ + (dt & 1) * 64 + v * 256}") for v in range(2)]
    def mf0(j, n):
        k, dt = 2 * j + n // 4, n % 4
        d = V(O + 16 * dt, 16)
        return I(MF, d, V(bank(j, n), 4), A(4 * k, 4), d if k else '0')
    pro += [pbar()] + tp()
    for n in range(8): pro += rd0(0, n)
    for j in range(1, 19):
        gaps = [[] for _ in range(8)]
        if j < 18:
            pro += [Wait(lg=0), pbar()] + tp()
            for n in range(8): gaps[n // 2] += rd0(j, n)
        else:
            if cfg.trace == 2: pro += trace_init(cfg)
            pro += barrier(0, 0) + stamp(cfg, 1) + trace_pt(cfg)
            for n in range(8): gaps[n // 2] += rd_frag(0, 'K', n, n)
            spread(gaps, split_dma(dma_after(0, False, cfg, 'A'), cfg.frac)[0], 4, 7)
        if j >= 2:
            spread(gaps, [I('v_accvgpr_write_b32', A(8 * (j - 2) + i), 0) for i in range(8)], 4, 7)
        pro += fixup(interleave([mf0(j - 1, n) for n in range(8)], gaps))
    pro += [I('v_accvgpr_write_b32', A(8 * 17 + i), 0) for i in range(8)] + [I('s_nop', 3)]
    for dt in range(4): pro += norm_tile(dt, S(sC), QF)
    pro += [I('s_nop', 0)]
    return pro

def tail_ptrs(cfg): return [I('s_load_dwordx2', S(SOUT, 2), S(0, 2), 80), I('s_load_dwordx2', S(SDBG, 2), S(0, 2), 88)]
def reduce_body(cfg):
    u = sT2; ln = 8
    o = [I('s_mov_b32', S(SOUT + 2), 16 * 96 * 1152 * 2), I('s_mov_b32', S(SOUT + 3), '0x20000'),
         I('s_lshl_b32', S(u), S(sW), 3), I('s_add_u32', S(u), S(u), S(sG)),
         I('s_mul_i32', S(sT0), S(sGam), 27), I('s_add_u32', S(sT0), S(sT0), S(u)), I('s_lshl_b32', S(sT0), S(sT0), 15)] + lane_id(ln) + [I('v_lshlrev_b32', V(9), 4, V(ln))]
    for g in range(8):
        for q in range(4):
            o.append(I('buffer_load_dwordx4', V(32 + 16 * g + 4 * q, 4), V(9), S(SWS, 4), S(sT0), mods=f"offen {'offset:%d ' % (1024 * q) if q else ''}{cfg.rdflags}"))
        o.append(I('s_add_u32', S(sT0), S(sT0), 4096))
    o += [I('s_mul_hi_u32', S(64), S(u), 477218589), I('s_mul_i32', S(65), S(64), 9), I('s_sub_u32', S(65), S(u), S(65)),
          I('s_mul_i32', S(66), S(sB), 96), I('s_lshl_b32', S(64), S(64), 5), I('s_add_u32', S(66), S(66), S(64)), I('s_mul_i32', S(66), S(66), 2304),
          I('s_mul_i32', S(67), S(sBlk), 1152), I('s_add_u32', S(66), S(66), S(67)), I('s_lshl_b32', S(65), S(65), 7), I('s_add_u32', S(66), S(66), S(65)),
          I('v_and_b32', V(4), 31, V(ln)), I('v_mul_u32_u24', V(4), 2304, V(4)), I('v_lshrrev_b32', V(5), 5, V(ln)), I('v_lshl_add_u32', V(4), V(5), 4, V(4)),
          I('s_mov_b32', S(67), '0xffff0000')]
    acc = 160
    for g in range(8):
        for q in range(4):
            o.append(Wait(vm=31 - 4 * g - q + (q if g == 7 else 0)))
            for d in range(4 * q, 4 * q + 4):
                src = V(32 + 16 * g + d)
                if g == 0:
                    o += [I('v_lshlrev_b32', V(acc + 2 * d), 16, src), I('v_and_b32', V(acc + 2 * d + 1), S(67), src)]
                else:
                    o += [I('v_lshlrev_b32', V(6), 16, src), I('v_and_b32', V(7), S(67), src),
                          I('v_add_f32', V(acc + 2 * d), V(acc + 2 * d), V(6)), I('v_add_f32', V(acc + 2 * d + 1), V(acc + 2 * d + 1), V(7))]
            if g == 7:
                pk = 192 + 4 * q
                o += [I('v_cvt_pk_bf16_f32', V(pk + i), V(acc + 8 * q + 2 * i), V(acc + 8 * q + 2 * i + 1)) for i in range(4)]
                o += [I('s_nop', 1), I('v_permlane32_swap_b32', V(pk), V(pk + 2)), I('v_permlane32_swap_b32', V(pk + 1), V(pk + 3)),
                      I('buffer_store_dwordx4', V(pk, 4), V(4), S(SOUT, 4), S(66), mods=f"offen {'offset:%d' % (32 * q) if q else ''}")]
    return o

def build_a(cfg):
    pro = a_prologue(cfg)
    com = []; nrm = []; lst = []
    steps = {}
    for s in range(13): steps[s] = a_step(s, cfg, False); com += steps[s]
    for s in range(13, 18): steps[s] = a_step(s, cfg, False); nrm += steps[s]
    for s in range(13, 24):
        lst += a_step(s, cfg, True)
        if s == 17: lst += stamp(cfg, 3)
    cfg.a_round = com + nrm
    chk = [I('s_cmp_eq_u32', S(sR), 3), I('s_cbranch_scc1', 'L_alast')]
    nxt = [I('s_add_u32', S(sR), S(sR), 1)]
    rs = []
    if cfg.stamps:
        for rr, n in ((1, 5), (3, 6)):
            rs += [I('s_cmp_eq_u32', S(sR), rr), I('s_cbranch_scc0', f'L_nost{n}')] + stamp(cfg, n) + [Label(f'L_nost{n}')]
    cfg.red = reduce_body(cfg)
    prog = pro + [Label("L_around"), Loop(3, com + chk + nrm + nxt + [NoTrace(rs + [I('s_branch', 'L_around')])]), Seq(com + chk), Label("L_alast")] + tail_ptrs(cfg) + lst + stamp(cfg, 4)
    prog += [I('s_waitcnt', 'vmcnt(0)'), I('s_barrier'), I('s_barrier'), Label('L_reduce')] + cfg.red + [Label('L_done')]
    prog += flush(cfg) + [I('s_endpgm'), NoTrace(rare_code())]
    return prog

def wf(k, u): return WF + 8 * (k % 3) + 4 * u
def rd_wq(k):
    o = []
    for u in range(2):
        for v in range(2):
            o.append(I('ds_read_b64_tr_b16', V(wf(k, u) + 2 * v, 2), V(vWl), mods=f"offset:{(k % WQRING) * KWQ + v * 256 + u * 64}", tag=('wqr', u == 0 and v == 0)))
    return o
def rd_xp(k):
    if k < 28: return []
    s = k - 28
    return [I('ds_read_b128', XF(k, w), V(vX0 if s % 2 == 0 else vX1), mods=f"offset:{w * TILE + 64 * (s >> 1)}") for w in range(3)]
def next_half_salu():
    return [I('s_add_u32', S(sEta), S(sEta), 1), I('s_lshr_b32', S(sT0), S(sEta), 1), I('s_add_u32', S(sT0), S(sT0), S(sB)), I('s_and_b32', S(sT0), S(sT0), 3),
            I('s_lshl_b32', S(sT1), S(sG), 2), I('s_add_u32', S(sT0), S(sT0), S(sT1)), I('s_lshl_b32', S(sT0), S(sT0), 8),
            I('s_xor_b32', S(sT1), S(sEta), S(sRot)), I('s_and_b32', S(sT1), S(sT1), 1), I('s_lshl_b32', S(sT1), S(sT1), 7), I('s_add_u32', S(sWqo), S(sT0), S(sT1)),
            I('s_cmp_ge_u32', S(sEta), 8), I('s_cselect_b32', S(SWQ + 2), 0, S(SWQ + 2))]
def dma_wq(k, cfg):
    o = []
    if k % 36 == 0: o += next_half_salu()
    for i in range(2):
        o += [I('s_mov_b32', 'm0', L_WQ + (k % WQRING) * KWQ + i * PIECE),
              I('buffer_load_dwordx4', V(vDQ0 + i), S(SWQ, 4), S(sWqo), mods=f"offen {cfg.wflags} lds", tag=('wq', i == 0))]
    o += [I('s_add_u32', S(sWqo), S(sWqo), 131072)]
    return o
def wq_wait(n): return Wait(vm=lambda op, ctx: op['stream'] == 'wq' and op['grp'] <= grp(ctx, 'wqr') + n)
def epi_tile(u, w):
    a = ACC + 16 * (3 * u + w); o = []
    for e in range(2):
        o += [I('v_mul_f32', V(a + 8 * e + i), S(sC), V(a + 8 * e + i)) for i in range(8)]
        o += [I('v_cvt_pk_bf16_f32', V(PK + 4 * e + k), V(a + 8 * e + 2 * k), V(a + 8 * e + 2 * k + 1)) for k in range(4)]
        o += [I('ds_write_b128', V(vQW), V(PK + 4 * e, 4), mods=f"offset:{w * 8192 + (2 * u + e) * 1024}")]
    return o
def chunks(x, n): return [x[i:i + n] for i in range(0, len(x), n)]

def q_round(cfg):
    slots = []
    epi_hd = lambda: [I('v_add_u32', V(vQW), S(sHalf), V(vQWl)), I('s_xor_b32', S(sHalf), S(sHalf), 4096)]
    for kk in range(72):
        k = kk % 36
        gaps = [[] for _ in range(6)]
        xr = rd_xp((k + 1) % 36)
        for i, x in enumerate(xr): gaps[i].append(x)
        rd = rd_wq((k + 2) % 36)
        if kk % 2 == 0: gaps[1].append(wq_wait(2))
        for i, x in enumerate(rd): gaps[2 + i].append(x)
        wl = dma_wq(k + cfg.la, cfg)
        cut = [i for i, x in enumerate(wl) if x.kind == 'dma'][0] + 1
        for i in range(6):
            u, w = i // 3, i % 3
            acc = V(ACC + 16 * i, 16)
            m = I(MF, acc, V(wf(k, u), 4), XF(k, w), acc if k else '0')
            pre = [Wait(lg=[V(wf(k, 0), 8)] + ([XF(k, x) for x in range(3)] if k >= 28 else []))] if i == 0 else []
            if kk == 36:
                e = (epi_hd() if i == 0 else []) + epi_tile(u, w)
                for c in chunks(e, 7): slots.append([[], None, c, []])
            slots.append([pre, m, gaps[i], wl[:cut] if i == 0 else wl[cut:] if i == 3 else []])
    e = epi_hd() + [I('s_nop', 7)]
    for i in range(6): e += epi_tile(i // 3, i % 3)
    for c in chunks(e, 7): slots.append([[], None, c, []])
    tr = []; flatten(cfg.a_round, tr)
    bpos = [i for i, x in enumerate(tr) if x.kind == 'barrier']
    tot = cost(tr); t0 = tot - cost(tr[:bpos[-1] + 1])
    tgt = [(cost(tr[:p + 1]) + t0) / tot for p in bpos[:-1]]
    sc = [max(32 if sl[1] else 0, (8 if sl[1] else 0) + 4 * sum(weight(x) for x in sl[0] + sl[2])) for sl in slots]
    cum = []; c = 0
    for x in sc: cum.append(c); c += x
    bslot = [0] + [min(range(len(slots)), key=lambda i: abs(cum[i] / c - t)) for t in tgt] + [len(slots)]
    out = []
    for s in range(18):
        seg = slots[bslot[s]:bslot[s + 1]]
        d = dma_after(s, False, cfg, 'Q')
        gl = [list(sl[2]) for sl in seg]
        mfs = [i for i, sl in enumerate(seg) if sl[1] is not None and not sl[3]] or list(range(len(seg)))
        ch = []; cur = []
        for it in d:
            cur.append(it)
            if it.kind == 'dma': ch.append(cur); cur = []
        if cur:
            if ch: ch[-1] += cur
            else: ch.append(cur)
        span = max(1, int(len(mfs) * cfg.qspan))
        for i, cc in enumerate(ch): gl[mfs[(i * span) // len(ch)]] += cc
        seq = barrier(s, 0 if s == 0 else None)
        for sl, g in zip(seg, gl):
            seq += sl[0] + ([sl[1]] if sl[1] is not None else []) + g + sl[3]
        out += fixup(seq)
    return out

def build_q(cfg):
    pro = [I('v_mov_b32', V(vWl), V(pWl)), I('v_lshlrev_b32', V(pT1), 4, V(pLane)), I('v_add_u32', V(vQWl), L_QB, V(pT1)),
           I('v_lshrrev_b32', V(pT1), 3, V(pLane)), I('v_lshlrev_b32', V(pT1), 14, V(pT1)), I('v_and_b32', V(pT2), 7, V(pLane)),
           I('v_lshl_add_u32', V(vDQ0), V(pT2), 4, V(pT1)), I('v_add_u32', V(vDQ1), 8192, V(vDQ0)),
           I('s_lshr_b32', S(sRot), S(sB), 2), I('s_and_b32', S(sRot), S(sRot), 1), I('s_lshl_b32', S(sHalf), S(sRot), 12)]
    a = cfg.a
    pro += [I('v_subrev_u32', V(vDKa), 3 * a * 1024, V(vDK)), I('v_subrev_u32', V(vDVa), 3 * a * 256, V(vDV))]
    pro += setup_kv(0) + [I('s_mov_b32', S(sWoo), 73728)] + head_of(0, sT0) + [I('s_lshl_b32', S(sPq), S(sT0), 8), I('s_mov_b32', S(sEta), 1)]
    def grp0(j):
        o = []
        for k in (2 * j, 2 * j + 1):
            for hh in range(2):
                for i in range(2):
                    o += [I('s_mov_b32', 'm0', wq0_loc(k) + hh * (KWQ - 128) + i * PIECE), I('s_nop', 0),
                          I('buffer_load_dwordx4', V(vDQ0 + i), S(SWQ, 4), S(sPq), mods=f"offen {'offset:128 ' if hh else ''}{cfg.pflags} lds", tag=('pw', k % 2 == 0 and hh == 0 and i == 0))]
            o += [I('s_add_u32', S(sPq), S(sPq), 131072)]
        return o
    def whole(idx):
        ty = SEQ_N[idx][0]; base = L_RING + idx * TILE
        if ty == 'W': return [Mark(('main', True))]
        voff, srd, soff, step = (vDKa, SK, sKo, 1024) if ty == 'K' else (vDVa, SV, sVo, 256)
        o = []
        for i in range(8):
            o += [I('s_mov_b32', 'm0', base + i * PIECE), I('s_add_u32', S(sT2), S(soff), step * i),
                  I('buffer_load_dwordx4', V(voff), S(srd, 4), S(sT2), mods=f"offen {cfg.kvflags} lds", tag=('main', i == 0))]
        return o + [I('s_add_u32', S(soff), S(soff), 8192)]
    def wqpre(k0, k1):
        o = []
        for k in range(k0, k1): o += dma_wq(k, cfg)
        return fixup(o)
    pro += [I('s_lshl_b32', S(sSt), S(sGam), 3), I('s_add_u32', S(sSt), S(sSt), S(sG)), I('s_lshl_b32', S(sSt), S(sSt), 8), I('s_add_u32', S(sSt), S(sSt), FLAG_OFF),
            I('v_lshlrev_b32', V(pT1), 2, V(pLane)), I('v_mov_b32', V(pT2), 0),
            I('buffer_store_dword', V(pT2), V(pT1), S(SWS, 4), S(sSt), mods="offen sc1")]
    for j in range(3): pro += grp0(j)
    pro += [I('s_waitcnt', 'vmcnt(24)'), I('s_barrier')] + stamp(cfg, 2)
    for D in range(4):
        ra, rb = (pA, pB) if D % 2 == 0 else (pC, pD)
        pro += [I('v_add_u32', V(ra), L_RING + 3 * D * TILE, V(pKl0)), I('v_add_u32', V(rb), L_RING + 3 * D * TILE, V(pKl1))]
        for sx in range(8):
            k = 8 * D + sx
            if k >= 28: continue
            for w in range(3):
                pro.append(I('ds_read_b128', XF(k, w), V(ra if sx % 2 == 0 else rb), mods=f"offset:{w * TILE + 64 * (sx >> 1)}"))
    pro += [I('s_waitcnt', 'lgkmcnt(0)'), I('s_barrier')]
    pro += [I('v_add_u32', V(vX0), L_XP, V(pKl0)), I('v_add_u32', V(vX1), L_XP, V(pKl1))]
    RA = cfg.ra
    for j in range(3, RA): pro += grp0(j)
    late = {18 - RA: lambda: whole(0) + whole(1) + wqpre(0, 3) + whole(2) + whole(3), 19 - RA: lambda: whole(4) + wqpre(3, 6) + whole(5) + whole(6),
            20 - RA: lambda: whole(7) + wqpre(6, cfg.la) + whole(8)}
    assert 18 - RA >= 7 and 19 - RA >= 10 and 20 - RA >= 13 and 15 - RA >= 6 and 16 - RA >= 8 and 17 - RA >= 11
    for j in range(18):
        if j + RA < 18: pro += grp0(j + RA)
        if j in late: pro += late[j]()
        pro += [Wait(vm=lambda op, ctx: op['stream'] == 'pw' and op['grp'] <= grp(ctx, 'pbar') + 1), pbar()]
    pro += [wq_wait(2)] + rd_wq(0) + rd_wq(1) + stamp(cfg, 1)
    rnd = [Label("L_qround")] + q_round(cfg) + [I('s_add_u32', S(sR), S(sR), 1), I('s_cmp_lt_u32', S(sR), 3), I('s_cbranch_scc1', 'L_qround')]
    last = []
    for s in range(24):
        last += barrier(s, 0 if s == 0 else None) + fixup(dma_after(s, True, cfg, 'Q'))
    prog = pro + [Loop(3, rnd)] + stamp(cfg, 3) + tail_ptrs(cfg) + last
    prog += [I('s_mov_b32', S(SDBG + 2), 256), I('s_mov_b32', S(SDBG + 3), '0x20000'), I('s_lshl_b32', S(sT0), S(sGam), 3),
             I('v_mov_b32', V(16), 0), I('v_mov_b32', V(17), 1), I('s_mov_b32', S(sT1), 0)] + lane_id(19) + [I('v_lshlrev_b32', V(19), 8, V(19)), I('v_mov_b32', V(20), 1),
             I('s_waitcnt', 'vmcnt(0)'), I('s_barrier'), I('s_mov_b64', 'exec', 1),
             I('buffer_atomic_add', V(17), V(16), S(SDBG, 4), S(sT0), mods="offen sc0"), I('s_waitcnt', 'vmcnt(0)'),
             I('v_readfirstlane_b32', S(sT2), V(17)), I('s_and_b32', S(sT0), S(sSt), hex(0xfffff800)), I('s_cmp_eq_u32', S(sT2), 7), I('s_cbranch_scc0', 'L_poll'),
             I('s_mov_b64', 'exec', 255), I('buffer_store_dword', V(20), V(19), S(SWS, 4), S(sT0), mods="offen sc1"), NoTrace([I('s_branch', 'L_polled')]),
             Label('L_poll'),
             I('buffer_load_dword', V(18), V(16), S(SWS, 4), S(sSt), mods="offen sc1"), I('s_waitcnt', 'vmcnt(0)'),
             I('v_readfirstlane_b32', S(sT2), V(18)), I('s_add_u32', S(sT1), S(sT1), 1),
             I('s_cmp_eq_u32', S(sT2), 1), I('s_cbranch_scc1', 'L_polled'),
             I('s_sleep', cfg.psleep), I('s_cmp_lt_u32', S(sT1), 0x100000), I('s_cbranch_scc1', 'L_poll'),
             Label('L_polled'), I('s_mov_b64', 'exec', -1), I('s_waitcnt', 'vmcnt(0)'), I('s_barrier')] + stamp(cfg, 4)
    prog += [I('s_cmp_lt_u32', S(sG), 3), I('s_cbranch_scc1', 'L_reduce'), NoTrace([I('s_branch', 'L_done')]), Seq(cfg.red)]
    return prog

def common_prologue(cfg):
    a = cfg.a
    o = [I('s_cmp_ge_u32', S(2), 256), I('s_cbranch_scc1', 'L_exit'),
         I('s_load_dwordx16', S(56, 16), S(0, 2), 0), I('s_load_dwordx4', S(72, 4), S(0, 2), 64), I('s_load_dwordx2', S(SWS, 2), S(0, 2), 96)]
    o += stamp(cfg, 0)
    o += [I('v_lshrrev_b32', V(vT0), 6, V(0)), I('v_and_b32', V(pLane), 63, V(0)), I('v_readfirstlane_b32', S(sW), V(vT0)),
          I('s_and_b32', S(sT0), S(2), 7), I('s_lshr_b32', S(sBlk), S(sT0), 2), I('s_and_b32', S(sG), S(sT0), 3),
          I('s_lshr_b32', S(sT1), S(2), 3), I('s_lshr_b32', S(sB), S(sT1), 1),
          I('v_lshrrev_b32', V(vT0), 4, V(pLane)), I('v_and_b32', V(pT1), 15, V(pLane)),
          I('v_xor_b32', V(pT2), V(pT1), V(vT0)), I('v_lshlrev_b32', V(pT2), 4, V(pT2)),
          I('v_mul_u32_u24', V(pX), 1152, V(vT0)), I('v_add_u32', V(pX), V(pX), V(pT2)),
          I('s_mul_i32', S(sT0), S(sW), 8 * 1152), I('v_add_u32', V(pX), S(sT0), V(pX)),
          I('s_mul_i32', S(sWX), S(sW), 2 * PIECE), I('s_mul_i32', S(sT2), S(sB), 110592),
          I('s_mov_b32', S(SX + 2), 1769472), I('s_mov_b32', S(SX + 3), '0x20000'),
          I('s_waitcnt', 'lgkmcnt(0)'), I('s_cmp_eq_u32', S(sBlk), 0),
          I('s_cselect_b32', S(SX), S(56), S(66)), I('s_cselect_b32', S(SX + 1), S(57), S(67))]
    for D in range(5):
        for w in range(3):
            col = 256 * D if D < 4 else 896
            base = L_RING + (3 * D + w) * TILE if D < 4 else L_XP + w * TILE
            for i in range(2):
                o += [I('s_add_u32', 'm0', S(sWX), base + i * PIECE), I('s_add_u32', S(sT0), S(sT2), (32 * w + 4 * i) * 1152 + col),
                      I('buffer_load_dwordx4', V(pX), S(SX, 4), S(sT0), mods=f"offen {cfg.pflags} lds")]
    o += [I('s_and_b32', S(sT1), S(sT1), 1), I('s_lshl_b32', S(sG), S(sG), 1), I('s_add_u32', S(sG), S(sG), S(sT1)),
          I('s_lshl_b32', S(sGam), S(sBlk), 4), I('s_add_u32', S(sGam), S(sGam), S(sB)),
          I('s_mov_b32', S(sR), 0), I('s_mov_b32', S(sT), hex(f2u(cfg.thr))), I('s_mov_b32', S(sC), hex(f2u(1.4426950408889634 / 128 ** 0.5))),
          I('s_mul_i32', S(sWK), S(sW), a * PIECE),
          I('v_lshlrev_b32', V(vDV), 11, V(vT0)), I('v_lshl_add_u32', V(vDV), V(pT1), 4, V(vDV)),
          I('v_lshl_add_u32', V(vDK), V(vT0), 8, V(pT2)),
          I('s_mul_i32', S(sT0), S(sW), a * 1024), I('v_add_u32', V(vDK), S(sT0), V(vDK)),
          I('s_mul_i32', S(sT0), S(sW), a * 256), I('v_add_u32', V(vDV), S(sT0), V(vDV)),
          I('v_lshrrev_b32', V(vT0), 3, V(pLane)), I('v_mul_u32_u24', V(vDW), 9216, V(vT0)), I('v_and_b32', V(vT0), 7, V(pLane)),
          I('v_lshl_add_u32', V(vDW), V(vT0), 4, V(vDW)), I('s_mul_i32', S(sT0), S(sW), a * 1152), I('v_add_u32', V(vDW), S(sT0), V(vDW)),
          I('v_bfe_u32', V(vT0), V(pLane), 2, 3), I('v_mul_u32_u24', V(pKl0), PIECE, V(vT0)),
          I('v_and_b32', V(vT0), 3, V(pLane)), I('v_lshl_add_u32', V(pKl0), V(vT0), 8, V(pKl0)),
          I('v_lshrrev_b32', V(pT1), 5, V(pLane)), I('v_xor_b32', V(vT0), V(vT0), V(pT1)), I('v_xor_b32', V(pT1), 2, V(vT0)),
          I('v_lshl_add_u32', V(pKl1), V(pT1), 4, V(pKl0)), I('v_lshl_add_u32', V(pKl0), V(vT0), 4, V(pKl0)),
          I('v_lshrrev_b32', V(vT0), 5, V(pLane)), I('v_bfe_u32', V(pT1), V(pLane), 2, 2), I('v_lshl_add_u32', V(vT0), V(vT0), 2, V(pT1)),
          I('v_mul_u32_u24', V(pVl), PIECE, V(vT0)), I('v_bfe_u32', V(vT0), V(pLane), 4, 1), I('v_lshl_add_u32', V(pVl), V(vT0), 5, V(pVl)),
          I('v_and_b32', V(vT0), 3, V(pLane)), I('v_lshl_add_u32', V(pVl), V(vT0), 3, V(pVl)),
          I('v_and_b32', V(vT0), 3, V(pLane)),
          I('v_and_b32', V(pT1), 1, V(vT0)), I('v_lshlrev_b32', V(pT1), 1, V(pT1)), I('v_lshrrev_b32', V(vT0), 1, V(vT0)), I('v_or_b32', V(vT0), V(vT0), V(pT1)),
          I('v_lshlrev_b32', V(pWl), 3, V(vT0)),
          I('v_bfe_u32', V(vT0), V(pLane), 4, 1), I('v_lshl_add_u32', V(pWl), V(vT0), 5, V(pWl)),
          I('v_bfe_u32', V(vT0), V(pLane), 5, 1), I('v_lshl_add_u32', V(pWl), V(vT0), 9, V(pWl)),
          I('v_bfe_u32', V(vT0), V(pLane), 3, 1), I('v_lshl_add_u32', V(pWl), V(vT0), 7, V(pWl)),
          I('v_bfe_u32', V(vT0), V(pLane), 2, 1), I('v_mul_u32_u24', V(vT0), PIECE, V(vT0)), I('v_add_u32', V(pWl), V(pWl), V(vT0)),
          I('s_cmp_eq_u32', S(sBlk), 0)]
    for srd, ia, ib, size in ((SK, 58, 68, 67108864), (SV, 60, 70, 67108864), (SWQ, 62, 72, WSIZE), (SWO, 64, 74, 0)):
        o += [I('s_cselect_b32', S(srd), S(ia), S(ib)), I('s_cselect_b32', S(srd + 1), S(ia + 1), S(ib + 1)),
              I('s_mov_b32', S(srd + 2), size), I('s_mov_b32', S(srd + 3), '0x20000')]
    o += [I('s_mov_b32', S(SWS + 2), WS_BYTES), I('s_mov_b32', S(SWS + 3), '0x20000')]
    return o

def hook(it, ctx, vq, lq):
    t = getattr(it, 'tag', None)
    if t is None: return None
    if t[0] == 'mbar':
        if any(o['stream'] == 'main' and o['grp'] <= grp(ctx, 'need') for o in vq): return "main loads outstanding at barrier"
        if grp(ctx, 'main') < grp(ctx, 'need') and grp(ctx, 'main') < 217: return "needed granule not issued"
    if t[0] == 'pbar':
        if any(o['stream'] == 'pw' and o['grp'] <= grp(ctx, 'pbar') for o in vq): return "wq0 loads outstanding at barrier"
    if t[0] == 'wqr':
        if any(o['stream'] == 'wq' and o['grp'] <= grp(ctx, 'wqr') for o in vq): return "wq load outstanding at read"
    if t[0] == 'wq':
        g = grp(ctx, 'wq') - WQRING
        if grp(ctx, 'wqr') < g or any(o['stream'] == 'wqr' and o['grp'] <= g for o in lq): return "wq ring overwrite before read done"
    if t[0] == 'main' and t[1]:
        if grp(ctx, 'main') - NG > grp(ctx, 'free') - 1: return "main ring overwrite too early"
    return None

def strip_lines(t, cfg):
    o = []; inq = False
    for l in t:
        w = l.split()
        op = w[0] if w else ''
        if op == 'L_qround:': inq = True
        if 'qmfma0' in cfg.strip and inq and op.startswith(('v_mfma', 'ds_read', 'v_mul', 'v_cvt')): continue
        if 'dma' in cfg.strip and op.startswith('buffer_load') and 'lds' in w: l = "    s_nop 0\n    s_nop 0"
        if 'mfma' in cfg.strip and op.startswith('v_mfma'): l = "    s_nop 0\n    s_nop 0"
        if 'exp' in cfg.strip and op.startswith('v_exp'): l = "    s_nop 0"
        if 'ds' in cfg.strip and op.startswith('ds_read'): l = "    s_nop 0\n    s_nop 0"
        if 'bar' in cfg.strip and op.startswith('s_barrier'): l = "    s_nop 0"
        if 'rare' in cfg.strip and op.startswith('s_cbranch_vccnz'): l = "    s_nop 0"
        if l.strip() == '; mark': continue
        o.append(l)
    return o

def generate(path, cfg):
    global rare_sites
    rare_sites = []
    com = common_prologue(cfg)
    pa = build_a(cfg); pq = build_q(cfg)
    errs = []
    for nm, prog in (("A", com + pa), ("Q", com + pq)):
        tr = []; flatten(prog, tr); resolve_waits(tr)
        errs += check_trace(tr, nm, hook)
        print(nm, "trace len", len(tr), "est cycles", cost(tr), "barriers", sum(1 for x in tr if x.kind == 'barrier'), file=sys.stderr)
    tr = []; flatten(cfg.a_round, tr); print("A round est", cost(tr), file=sys.stderr)
    for par in range(2):
        errs += check_trace([I(MF, V(O + 48, 16), V(32, 4), V(SB[1 - par], 4), V(O + 48, 16))] + rare_body(par) + [I(MF, V(SB[1 - par], 16), V(32, 4), V(QF, 4), V(NEGM, 16))], "rare")
    if errs:
        for e in errs[:40]: print("ERR", e, file=sys.stderr)
        raise SystemExit(f"{len(errs)} errors")
    a = Asm()
    file_begin(a, [(KNAME, 256, 256, L_END)])
    kernel_begin(a, KNAME)
    t = []
    emit_text(com, t)
    emit_text([I('s_cmp_eq_u32', S(sW), 3), I('s_cbranch_scc1', 'L_qwave')], t)
    emit_text(pa, t)
    t.append("L_qwave:")
    emit_text(pq, t)
    t.append("L_exit:\n    s_endpgm")
    a("\n".join(strip_lines(t, cfg)))
    kernel_desc(a, KNAME, 512, 256)
    open(path, "w").write(a.text())
    import subprocess
    r = subprocess.run(["clang", "-x", "assembler", "-target", "amdgcn-amd-amdhsa", "-mcpu=gfx950", "-c", path, "-o", "chk.o"], capture_output=True, text=True)
    if r.returncode: raise SystemExit(r.stderr[:2000])
    r = subprocess.run(["llvm-objdump", "-h", "chk.o"], capture_output=True, text=True)
    print([l for l in r.stdout.splitlines() if '.text' in l][0].split()[2], file=sys.stderr)

if __name__ == "__main__":
    ap = argparse.ArgumentParser()
    ap.add_argument("out")
    ap.add_argument("--stamps", action="store_true"); ap.add_argument("--cyc", action="store_true"); ap.add_argument("--trace", type=int, default=0)
    ap.add_argument("--kvflags", default="nt"); ap.add_argument("--wflags", default=""); ap.add_argument("--pflags", default=""); ap.add_argument("--woflags", default=""); ap.add_argument("--fflags", default="")
    ap.add_argument("--stflags", default="sc1"); ap.add_argument("--rdflags", default="sc1")
    ap.add_argument("--thr", type=float, default=10.0); ap.add_argument("--strip", default="")
    ap.add_argument("--pf", type=int, default=1); ap.add_argument("--ra", type=int, default=5); ap.add_argument("--a", type=int, default=2)
    ap.add_argument("--psleep", type=int, default=2); ap.add_argument("--la", type=int, default=12); ap.add_argument("--frac", type=float, default=0.3); ap.add_argument("--qspan", type=float, default=0.8)
    x = ap.parse_args()
    cfg = Cfg()
    for k, v in vars(x).items(): setattr(cfg, k, v)
    cfg.clk = 's_memtime' if x.cyc else 's_memrealtime'; cfg.strip = x.strip.split(',')
    generate(x.out, cfg)
```

```python
import sys, argparse, struct
from asmlib import *
from fw import *

I = Ins
NG = 10; PIECE = 1088; TILE = 8704
L_WQ = 0; L_RING = 26112; L_QB = L_RING + NG * TILE; L_XP = L_QB + 24576; L_END = L_XP + 26112
assert L_END == 163840
KWQ = 2176; WQRING = 12
PART_BYTES = 256 * 27 * 4096
FLAG_OFF = PART_BYTES; WS_BYTES = PART_BYTES + 256 * 256
WSIZE = 4718592
STAMP_OFF = 64 * 1024 * 1024
MF = 'v_mfma_f32_32x32x16_bf16'
sW = 3; SK = 4; SV = 8; SWO = 12; SWQ = 16; SWS = 20; SX = 24
sR = 28; sLC = 29; sRET = 30
sKo = 32; sVo = 33; sWoo = 34; sWqo = 35; sWK = 40; sWX = 42
sB = 43; sG = 44; sBlk = 45; sT = 46; sC = 47; sT0 = 48; sT1 = 49; sT2 = 50; sEta = 51; sRot = 52; sHalf = 53; sSt = 54; sGam = 55
SOUT = 56; SDBG = 60; sPq = 64
sST = 80
vDK = 7; vDV = 8; vDW = 9; vT0 = 10
vKa = (1, 2); vVa = 3; vKb = (4, 5); vVb = 6
vL0 = 11; vL1 = 12; vMx = 13; vQl = 0; vTr0 = 14; vTr1 = 15
FB = 16; NEGM = 48; SB = (64, 80); QF = 96; OB = 128; O = 160
def OUT(t): return A(16 * t, 16) if t < 16 else V(224 + 16 * (t - 16), 16)
pLane = 100; pKl0 = 101; pKl1 = 102; pVl = 103; pWl = 104; pX = 105; pT1 = 106; pT2 = 107; pA = 108; pB = 109; pC = 110; pD = 111
vWl = 1; vX0 = 2; vX1 = 3; vQWl = 4; vQW = 5; vDQ0 = 11; vDQ1 = 12; vDKa = 13; vDVa = 14
WF = 16; XT = 40; PK = 64; ACC = 72; XR = 168
def XF(k, w):
    if k >= 28: return V(XT + 12 * (k & 1) + 4 * w, 4)
    n = 3 * k + w
    return A(4 * n, 4) if n < 64 else V(XR + 4 * (n - 64), 4)

def f2u(x): return struct.unpack('<I', struct.pack('<f', x))[0]
class Cfg: pass

def step_parts(s):
    if s == 0: return [('K', 0), ('W', 0)]
    if s <= 15: return [('K', s), ('W', s), ('V', s - 1)]
    if s == 16: return [('W', 16), ('V', 15)]
    if s == 17: return [('W', 17)]
    return [('F', 3 * (s - 18) + e) for e in range(3)]
def start(s): return sum(len(step_parts(x)) for x in range(s))
SEQ_N = [g for s in range(18) for g in step_parts(s)]
SEQ_L = [g for s in range(24) for g in step_parts(s)]
def gran(idx, last):
    if last: return SEQ_L[idx] if idx < len(SEQ_L) else None
    return SEQ_N[idx % 50]
def issue_range(s):
    hi = start(s) + NG - 1
    n = len(step_parts(s - 1)) if s else 1
    return range(hi - n + 1, hi + 1)

def head_of(plus, dst):
    o = [I('s_add_u32', S(sT0), S(sR), S(sB))]
    if plus: o.append(I('s_add_u32', S(sT0), S(sT0), plus))
    return o + [I('s_and_b32', S(sT0), S(sT0), 3), I('s_lshl_b32', S(sT1), S(sG), 2), I('s_add_u32', S(dst), S(sT0), S(sT1))]
def setup_kv(plus):
    return head_of(plus, sT0) + [I('s_lshl_b32', S(sT1), S(sB), 5), I('s_add_u32', S(sT0), S(sT0), S(sT1)), I('s_lshl_b32', S(sKo), S(sT0), 17), I('s_mov_b32', S(sVo), S(sKo))]
def setup_wo():
    return head_of(0, sT0) + [I('s_mul_i32', S(sWoo), S(sT0), 147456), I('s_mov_b32', S(SWO + 2), WSIZE)]

def dma_gran(idx, last, cfg, role):
    g = gran(idx, last)
    if g is None: return []
    ty, n = g
    a = cfg.a
    cnt = a if role == 'A' else 8 - 3 * a
    o = []
    if idx >= 50 and g == ('K', 0): o += setup_kv(1)
    if idx >= 50 and g in (('W', 0), ('F', 0)): o += setup_wo()
    voff, srd, soff, step, fl = {'K': (vDK, SK, sKo, 1024, cfg.kvflags), 'V': (vDV, SV, sVo, 256, cfg.kvflags)}.get(ty, (vDW, SWO, sWoo, 1152, cfg.woflags if ty == 'W' else cfg.fflags))
    base = L_RING + (idx % NG) * TILE
    for i in range(cnt):
        off = step * i; so = soff
        if off > 4095:
            o += [I('s_add_u32', 'm0', S(sWK), base + i * PIECE), I('s_add_u32', S(sT2), S(soff), off)]; so = sT2; off = 0
        else:
            o += [I('s_add_u32', 'm0', S(sWK), base + i * PIECE - off)]
        o.append(I('buffer_load_dwordx4', V(voff), S(srd, 4), S(so), mods=f"offen {'offset:%d ' % off if off else ''}{fl} lds", tag=('main', i == 0)))
    if cnt == 0: o.append(Mark(('main', True)))
    if ty in 'KV': o.append(I('s_add_u32', S(soff), S(soff), 8192))
    elif n % 2 == 0: o.append(I('s_add_u32', S(soff), S(soff), 73728))
    else: o.append(I('s_sub_u32', S(soff), S(soff), 73600))
    return o
def dma_after(s, last, cfg, role):
    o = []
    for idx in issue_range(s): o += dma_gran(idx, last, cfg, role)
    return o

def fixup(seq):
    out = []
    for it in seq:
        if it.kind == 'dma' and out and out[-1].kind == 'salu' and 'm0' in out[-1].writes:
            m = out[-1]
            p = out[-2] if len(out) > 1 else None
            if p is not None and p.kind in ('valu', 'trans', 'dsr', 'dsw', 'mfma', 'salu') and not (set(p.writes) & set(m.reads)) and 'm0' not in p.writes and 'm0' not in p.reads and not (p.kind == 'salu' and ('scc' in p.writes or p.op.startswith('s_cselect'))):
                out[-2], out[-1] = m, p
            else:
                out.append(I('s_nop', 0))
        out.append(it)
    return out
def front(gaps):
    for g in gaps:
        for i, it in enumerate(g):
            if it.kind in ('valu', 'trans'): continue
            if i and it.kind in ('salu', 'dsr', 'dma', 'wait'): g.insert(0, g.pop(i))
            break
    return gaps
def merge(a, b, ra=1, rb=1):
    a = list(a); b = list(b); o = []
    while a or b:
        o += a[:ra]; a = a[ra:]
        o += b[:rb]; b = b[rb:]
    return o

def barrier(s, lg, wq_ahead=None):
    def pred(op, ctx):
        if op['stream'] == 'main' and op['grp'] <= grp(ctx, 'need'): return True
        return False
    nfree = len(step_parts(s - 1)) if s else 1
    return [Mark(('need', True)) for _ in step_parts(s)] + [Wait(lg=lg, vm=pred), I('s_barrier', tag=('mbar', True))] + [Mark(('free', True)) for _ in range(nfree)]

def stamp(cfg, n): return [I(cfg.clk, S(sST + 2 * n, 2))] if cfg.stamps else []
def trace_init(cfg):
    return [I('s_mov_b32', S(76), 0), I('s_mov_b32', S(77), 0), I('v_mov_b32', V(vTr0), 0), I('v_mov_b32', V(vTr1), 0), I('s_memrealtime', S(96, 2)), I('s_memtime', S(98, 2)), I('s_waitcnt', 'lgkmcnt(0)')]
def trace_pt(cfg):
    if not cfg.trace: return []
    return [I('s_mov_b32', 'm0', S(77)), I('s_nop', 0), I('v_writelane_b32', V(vTr0), S(96), 'm0'), I('v_writelane_b32', V(vTr1), S(98), 'm0'), I('s_memrealtime', S(96, 2)), I('s_memtime', S(98, 2)),
            I('s_add_u32', S(76), S(76), 1), I('s_lshr_b32', S(77), S(76), 1) if cfg.trace == 2 else I('s_min_u32', S(77), S(76), 63)]
def lane_id(dst): return [I('v_mbcnt_lo_u32_b32', V(dst), -1, 0), I('v_mbcnt_hi_u32_b32', V(dst), -1, V(dst))]
def flush(cfg):
    o = []
    if cfg.dbgst:
        o += [I('s_waitcnt', 'vmcnt(0)'), I(cfg.clk, S(sST + 14, 2)), I('s_waitcnt', 'lgkmcnt(0)'), I('s_mov_b32', S(SDBG + 2), 256), I('s_mov_b32', S(SDBG + 3), '0x20000'),
              I('v_mov_b32', V(vT0), 0), I('s_cmp_eq_u32', S(sW), 0), I('s_cbranch_scc0', 'L_nodbg'), I('s_mov_b64', 'exec', 1), I('s_not_b32', S(sST), S(sST))]
        for j, n in enumerate((0, 1, 5, 6, 3, 4, 7)):
            o += [I('v_mov_b32', V(32 + j), S(sST + 2 * n)), I('buffer_atomic_umax', V(32 + j), V(vT0), S(SDBG, 4), 0, mods=f"offen offset:{8 * j + 4}")]
        o += [Label('L_nodbg')]
        return o
    if cfg.trace:
        o += [I('s_lshl_b32', S(sT0), S(2), 2), I('s_add_u32', S(sT0), S(sT0), S(sW)), I('s_lshl_b32', S(sT0), S(sT0), 9), I('s_add_u32', S(sT0), S(sT0), STAMP_OFF + 131072),
              I('s_mov_b32', S(SWS + 2), STAMP_OFF + 131072 + 524288)] + lane_id(vT0) + [I('v_lshlrev_b32', V(vT0), 2, V(vT0)),
              I('buffer_store_dword', V(vTr0), V(vT0), S(SWS, 4), S(sT0), mods="offen"), I('buffer_store_dword', V(vTr1), V(vT0), S(SWS, 4), S(sT0), mods="offen offset:256")]
    if cfg.stamps:
        o += [I('s_waitcnt', 'vmcnt(0)'), I(cfg.clk, S(sST + 14, 2)), I('s_waitcnt', 'vmcnt(0) lgkmcnt(0)'),
             I('s_lshl_b32', S(sT0), S(2), 2), I('s_add_u32', S(sT0), S(sT0), S(sW)), I('s_lshl_b32', S(sT0), S(sT0), 6),
             I('s_add_u32', S(sT0), S(sT0), STAMP_OFF), I('s_mov_b32', S(SWS + 2), STAMP_OFF + 65536), I('v_mov_b32', V(vT0), 0), I('s_mov_b64', 'exec', 1)]
        for q in range(4):
            o += [I('v_mov_b32', V(32 + 4 * q + i), S(sST + 4 * q + i)) for i in range(4)]
            o += [I('buffer_store_dwordx4', V(32 + 4 * q, 4), V(vT0), S(SWS, 4), S(sT0), mods=f"offen offset:{16 * q}")]
    return o

def fb(n): return FB + 4 * (n % 8)
def FBr(n): return V(fb(n), 4)
def rd_frag(idx, ty, i, n):
    pos = idx % NG
    hi = pos >= 5
    base = (pos - 5 * hi) * TILE
    if ty == 'K':
        return [I('ds_read_b128', V(fb(n), 4), V((vKb if hi else vKa)[i & 1]), mods=f"offset:{base + 64 * (i >> 1)}")]
    vv = V(vVb if hi else vVa)
    if ty == 'V':
        tp, dt = i // 4, i % 4
        return [I('ds_read_b64_tr_b16', V(fb(n) + 2 * u, 2), vv, mods=f"offset:{base + (2 * tp + u) * 256 + dt * 64}") for u in range(2)]
    t, u = i // 2, i % 2
    return [I('ds_read_b64_tr_b16', V(fb(n) + 2 * v, 2), vv, mods=f"offset:{base + (2 * t + v) * 128 + u * 64}") for v in range(2)]
def rd_Q(i): return [I('ds_read_b128', V(QF + 4 * i, 4), V(vQl), mods=f"offset:{1024 * i}")]
def mf_part(g, i, n):
    ty, x = g
    if ty == 'K':
        s = V(SB[x % 2], 16)
        return I(MF, s, FBr(n), V(QF + 4 * i, 4), s if i else ('0' if x == 0 else V(NEGM, 16)))
    if ty == 'V':
        tp, dt = i // 4, i % 4
        d = V(O + 16 * dt, 16)
        return I(MF, d, FBr(n), V(SB[x % 2] + 4 * tp, 4), '0' if (x == 0 and tp == 0) else d)
    t, u = i // 2, i % 2
    d = OUT(2 * (x // 2) + u)
    return I(MF, d, FBr(n), V(OB + 16 * (x % 2) + 4 * t, 4), d)

def softmax_list(g):
    s = SB[g % 2]; o = []
    for k in range(8):
        o += [I('v_exp_f32', V(s + 2 * k), V(s + 2 * k)), I('v_exp_f32', V(s + 2 * k + 1), V(s + 2 * k + 1)),
              I('v_add_f32', V(vL0), V(vL0), V(s + 2 * k)), I('v_add_f32', V(vL1), V(vL1), V(s + 2 * k + 1)),
              I('v_cvt_pk_bf16_f32', V(s + k), V(s + 2 * k), V(s + 2 * k + 1))]
    return o
def max_list(g):
    s = SB[g % 2]
    o = [I('v_max3_f32', V(vMx), V(s), V(s + 1), V(s + 2))]
    for i in range(3, 15, 2): o.append(I('v_max3_f32', V(vMx), V(vMx), V(s + i), V(s + i + 1)))
    o.append(I('v_max_f32', V(vMx), V(vMx), V(s + 15)))
    return o
def norm_tile(dt, src, dst):
    o = [I('v_mul_f32', V(O + 16 * dt + i), src, V(O + 16 * dt + i)) for i in range(16)]
    return o + [I('v_cvt_pk_bf16_f32', V(dst + 8 * dt + k), V(O + 16 * dt + 2 * k), V(O + 16 * dt + 2 * k + 1)) for k in range(8)]

def store_tile(t, cfg):
    tmp = O + 32 * (t & 1); pk = tmp + 16; q0 = 2 * (t & 1)
    o = []
    for k in range(8):
        if t < 16:
            o += [I('v_accvgpr_read_b32', V(tmp + 2 * k), A(16 * t + 2 * k)), I('v_accvgpr_read_b32', V(tmp + 2 * k + 1), A(16 * t + 2 * k + 1))]
            o += [I('v_cvt_pk_bf16_f32', V(pk + k), V(tmp + 2 * k), V(tmp + 2 * k + 1))]
        else:
            b = 224 + 16 * (t - 16)
            o += [I('v_cvt_pk_bf16_f32', V(pk + k), V(b + 2 * k), V(b + 2 * k + 1))]
        if k % 4 == 3:
            q = q0 + k // 4
            o.append(I('buffer_store_dwordx4', V(pk + k - 3, 4), V(vQl), S(SWS, 4), S(sSt), mods=f"offen {'offset:%d ' % (1024 * q) if q else ''}{cfg.stflags}"))
    if t & 1: o.append(I('s_add_u32', S(sSt), S(sSt), 32768))
    return o

rare_sites = []
def split_dma(d, frac):
    idx = [i for i, x in enumerate(d) if x.kind == 'dma']
    if len(idx) < 2: return d, []
    n = max(1, int(len(idx) * frac + 0.5))
    c = idx[n - 1] + 1
    return d[:c], d[c:]

def a_step(s, cfg, last):
    parts = step_parts(s); L = 8 * len(parts); st = start(s)
    final = last and s == 23
    nxt = s + 1 if (last or s < 17) else 0
    mf = [mf_part(parts[n // 8], n % 8, n) for n in range(L)]
    gaps = [[] for _ in range(L)]
    for n in range(8, L): gaps[n - 8] += rd_frag(st + n // 8, parts[n // 8][0], n % 8, n)
    b = L - 6
    FR = cfg.frac
    head = split_dma(dma_after(s, last, cfg, 'A'), FR)[1]
    tail = []
    if not final:
        gaps[b] += barrier(nxt, 0) + trace_pt(cfg)
        np_ = step_parts(nxt)[0]
        nst = start(s + 1)
        for i in range(8):
            gaps[b + max(0, i - 2)] += rd_frag(nst, np_[0], i, i) + (rd_Q(i) if nxt == 0 else [])
        tail = split_dma(dma_after(nxt, last, cfg, 'A') if nxt else dma_after(18, False, cfg, 'A'), FR)[0]
    spread_even(gaps, head, 0, b - 1)
    spread_even(gaps, tail, b, L - 1)
    post = []; pre = []
    name = f"s{s}{'l' if last and s >= 13 else ''}"
    if s == 0:
        w = [I('v_mov_b32', V(vL0), 0), I('v_mov_b32', V(vL1), 0)]
        spread(gaps, w, 0, 3)
        x = max_list(0) + [I('v_mov_b32', V(vT0), V(vMx)), I('s_nop', 1), I('v_permlane32_swap_b32', V(vT0), V(vMx)), I('v_max_f32', V(vMx), V(vMx), V(vT0))]
        x += merge([I('v_sub_f32', V(NEGM + i), 0, V(vMx)) for i in range(16)], [I('v_sub_f32', V(SB[0] + i), V(SB[0] + i), V(vMx)) for i in range(16)])
        k = 30
        spread(gaps, x[:k], 10, 15); post = x[k:] + [I('s_nop', 0)]
    elif s <= 15:
        sm = softmax_list(s - 1)
        spread(gaps, sm[:20], 0, 8); spread(gaps, sm[20:], 9, 17)
        spread(gaps, max_list(s) + [I('v_cmp_lt_f32', 'vcc', S(sT), V(vMx))], 18, 23)
        post = [I('s_cbranch_vccnz', f"L_rare_{name}"), Label(f"L_back_{name}")]
        rare_sites.append((name, s % 2))
    elif s == 16:
        sm = softmax_list(15)
        spread(gaps, sm[:20], 0, 5); spread(gaps, sm[20:], 6, 10)
        red = [I('v_add_f32', V(vL0), V(vL0), V(vL1)), I('v_mov_b32', V(vT0), V(vL0)), I('s_nop', 1),
               I('v_permlane32_swap_b32', V(vT0), V(vL0)), I('v_add_f32', V(vL0), V(vL0), V(vT0)), I('v_rcp_f32', V(vL0), V(vL0))]
        spread(gaps, red, 12, 15)
    elif s == 17:
        x = norm_tile(0, V(vL0), OB) + norm_tile(1, V(vL0), OB)
        y = norm_tile(2, V(vL0), OB) + norm_tile(3, V(vL0), OB)
        spread(gaps, x, 1, 7)
        post = y + [I('s_nop', 0)]
        if last: post = lane_id(vQl) + [I('v_lshlrev_b32', V(vQl), 4, V(vQl))] + post
    else:
        for e, (ty, x) in enumerate(parts):
            xp = x - 1
            if xp >= 1 and xp % 2 == 1:
                p = xp // 2
                spread(gaps, store_tile(2 * p, cfg) + store_tile(2 * p + 1, cfg), 8 * e + 2, min(8 * e + 13, L - 1))
        if final: post = [I('s_nop', 11)] + store_tile(16, cfg) + store_tile(17, cfg)
    front(gaps)
    for n in range(0, L, 4):
        if n > b and not final: break
        cov = [FBr(x) for x in range(n, min(n + 4, (b + 1) if (n + 4 > b + 1 and not final) else n + 4))]
        if s == 0 and n < 8: cov += [V(QF + 4 * x, 4) for x in range(n, n + 4)]
        mf[n] = [Wait(lg=cov), mf[n]]
    return pre + fixup(interleave(mf, gaps)) + post

def rare_body(par):
    s = SB[par]
    o = [I('s_nop', 11), I('v_mov_b32', V(vT0), V(vMx)), I('s_nop', 1), I('v_permlane32_swap_b32', V(vT0), V(vMx)),
         I('v_max3_f32', V(vMx), V(vMx), V(vT0), 0), I('v_sub_f32', V(vT0), 0, V(vMx)), I('v_exp_f32', V(vT0), V(vT0))]
    o += [I('v_sub_f32', V(s + i), V(s + i), V(vMx)) for i in range(16)]
    o += [I('v_sub_f32', V(NEGM + i), V(NEGM + i), V(vMx)) for i in range(16)]
    o += [I('v_mul_f32', V(vL0), V(vL0), V(vT0)), I('v_mul_f32', V(vL1), V(vL1), V(vT0))]
    o += [I('v_mul_f32', V(O + i), V(O + i), V(vT0)) for i in range(64)]
    o += [I('s_nop', 1)]
    return o
def rare_code():
    o = []
    for name, par in rare_sites:
        o += [Label(f"L_rare_{name}"), I('s_call_b64', S(sRET, 2), f"L_rare_sub{par}"), I('s_branch', f"L_back_{name}")]
    for par in range(2):
        o += [Label(f"L_rare_sub{par}")] + rare_body(par) + [I('s_setpc_b64', S(sRET, 2))]
    return o

def wq0_loc(k):
    if k < 6: return L_WQ + 2 * KWQ * k
    if k < 26: return L_RING + 2 * KWQ * (k - 6)
    if k < 31: return L_QB + 2 * KWQ * (k - 26)
    if k < 33: return L_RING + 1 * TILE + 2 * KWQ * (k - 31)
    if k < 35: return L_RING + 3 * TILE + 2 * KWQ * (k - 33)
    return L_RING + 6 * TILE
def pbar(): return I('s_barrier', tag=('pbar', True))

def a_prologue(cfg):
    pro = []
    w = sW
    tp = lambda: trace_pt(cfg) if cfg.trace == 1 else []
    pro += [I('v_lshlrev_b32', V(pT1), 4, V(pLane)), I('s_lshl_b32', S(sT0), S(w), 13), I('s_add_u32', S(sT0), S(sT0), L_QB),
            I('v_add_u32', V(vQl), S(sT0), V(pT1)),
            I('s_mul_i32', S(sT0), S(sGam), 27), I('s_mul_i32', S(sT1), S(w), 9), I('s_add_u32', S(sT0), S(sT0), S(sT1)),
            I('s_lshl_b32', S(sT0), S(sT0), 3), I('s_add_u32', S(sT0), S(sT0), S(sG)), I('s_lshl_b32', S(sSt), S(sT0), 12)]
    if cfg.pf:
        pro += [I('s_getpc_b64', S(68, 2)), Label('L_pcref'), I('s_mov_b32', S(70), 'L_exit-L_pcref'), I('s_mov_b32', S(71), '0x20000'),
                I('s_lshr_b32', S(sT0), S(2), 3), I('s_mul_i32', S(sT0), S(sT0), 3), I('s_add_u32', S(sT0), S(sT0), S(w)), I('s_lshl_b32', S(sT0), S(sT0), 10),
                I('buffer_load_dwordx4', V(FB, 4), V(pT1), S(68, 4), S(sT0), mods="offen")]
    if cfg.trace == 1: pro += trace_init(cfg)
    pro += setup_kv(0) + [I('s_add_u32', S(sKo), S(sKo), 4 * 8192), I('s_add_u32', S(sVo), S(sVo), 2 * 8192), I('s_mov_b32', S(sWoo), 73728)]
    pro += [Mark(('main', True)) for _ in range(9)]
    pro += [I('v_add_u32', V(vKa[0]), L_RING, V(pKl0)), I('v_add_u32', V(vKa[1]), L_RING, V(pKl1)), I('v_add_u32', V(vVa), L_RING, V(pVl)),
            I('v_add_u32', V(vKb[0]), L_RING + 5 * TILE, V(pKl0)), I('v_add_u32', V(vKb[1]), L_RING + 5 * TILE, V(pKl1)), I('v_add_u32', V(vVb), L_RING + 5 * TILE, V(pVl))]
    pro += [I('v_accvgpr_write_b32', A(i), 0) for i in range(144, 256)] + [I('v_mov_b32', V(224 + i), 0) for i in range(32)] + [I('v_mov_b32', V(OB + i), 0) for i in range(32)]
    pro += [I('s_mul_i32', S(sT1), S(w), TILE)]
    pro += [I('s_waitcnt', f"vmcnt({1 if cfg.pf else 0})"), I('s_barrier')] + stamp(cfg, 2) + tp()
    for D in range(5):
        base = L_RING + 3 * D * TILE if D < 4 else L_XP
        ra, rb = (pA, pB) if D % 2 == 0 else (pC, pD)
        pro += [I('s_add_u32', S(sT0), S(sT1), base), I('v_add_u32', V(ra), S(sT0), V(pKl0)), I('v_add_u32', V(rb), S(sT0), V(pKl1))]
        for sx in range(8):
            k = 8 * D + sx if D < 4 else 28 + sx
            if D < 4 and k >= 28: continue
            pro.append(I('ds_read_b128', A(4 * k, 4), V(ra if sx % 2 == 0 else rb), mods=f"offset:{64 * (sx >> 1)}"))
    pro += [I('s_waitcnt', 'vmcnt(0) lgkmcnt(0)'), I('s_barrier')] + tp() + [I('s_waitcnt', 'lgkmcnt(0)')]
    SEG = 61440
    pro += [I('v_add_u32', V(pA), SEG, V(pWl)), I('v_add_u32', V(pB), 2 * SEG, V(pWl))]
    bank = lambda j, n: (FB if j % 2 == 0 else NEGM) + 4 * n
    def rd0(j, n):
        k, dt = 2 * j + n // 4, n % 4
        loc = wq0_loc(k); sg = loc // SEG
        return [I('ds_read_b64_tr_b16', V(bank(j, n) + 2 * v, 2), V((pWl, pA, pB)[sg]), mods=f"offset:{loc - sg * SEG + (dt >> 1) * KWQ + (dt & 1) * 64 + v * 256}") for v in range(2)]
    def mf0(j, n):
        k, dt = 2 * j + n // 4, n % 4
        d = V(O + 16 * dt, 16)
        return I(MF, d, V(bank(j, n), 4), A(4 * k, 4), d if k else '0')
    pro += [pbar()] + tp()
    for n in range(8): pro += rd0(0, n)
    for j in range(1, 19):
        gaps = [[] for _ in range(8)]
        if j < 18:
            pro += [Wait(lg=0), pbar()] + tp()
            for n in range(8): gaps[n // 2] += rd0(j, n)
        else:
            if cfg.trace == 2: pro += trace_init(cfg)
            pro += barrier(0, 0) + stamp(cfg, 1) + trace_pt(cfg)
            for n in range(8): gaps[n // 2] += rd_frag(0, 'K', n, n)
            spread(gaps, split_dma(dma_after(0, False, cfg, 'A'), cfg.frac)[0], 4, 7)
        if j >= 2:
            spread(gaps, [I('v_accvgpr_write_b32', A(8 * (j - 2) + i), 0) for i in range(8)], 4, 7)
        pro += fixup(interleave([mf0(j - 1, n) for n in range(8)], gaps))
    pro += [I('v_accvgpr_write_b32', A(8 * 17 + i), 0) for i in range(8)] + [I('s_nop', 3)]
    for dt in range(4): pro += norm_tile(dt, S(sC), QF)
    pro += [I('s_nop', 0)]
    return pro

def tail_ptrs(cfg): return [I('s_load_dwordx2', S(SOUT, 2), S(0, 2), 80), I('s_load_dwordx2', S(SDBG, 2), S(0, 2), 88)]
def reduce_body(cfg):
    u = sT2; ln = 8
    o = [I('s_mov_b32', S(SOUT + 2), 16 * 96 * 1152 * 2), I('s_mov_b32', S(SOUT + 3), '0x20000'),
         I('s_lshl_b32', S(u), S(sW), 3), I('s_add_u32', S(u), S(u), S(sG)),
         I('s_mul_i32', S(sT0), S(sGam), 27), I('s_add_u32', S(sT0), S(sT0), S(u)), I('s_lshl_b32', S(sT0), S(sT0), 15)] + lane_id(ln) + [I('v_lshlrev_b32', V(9), 4, V(ln))]
    for g in range(8):
        for q in range(4):
            o.append(I('buffer_load_dwordx4', V(32 + 16 * g + 4 * q, 4), V(9), S(SWS, 4), S(sT0), mods=f"offen {'offset:%d ' % (1024 * q) if q else ''}{cfg.rdflags}"))
        o.append(I('s_add_u32', S(sT0), S(sT0), 4096))
    o += [I('s_mul_hi_u32', S(64), S(u), 477218589), I('s_mul_i32', S(65), S(64), 9), I('s_sub_u32', S(65), S(u), S(65)),
          I('s_mul_i32', S(66), S(sB), 96), I('s_lshl_b32', S(64), S(64), 5), I('s_add_u32', S(66), S(66), S(64)), I('s_mul_i32', S(66), S(66), 2304),
          I('s_mul_i32', S(67), S(sBlk), 1152), I('s_add_u32', S(66), S(66), S(67)), I('s_lshl_b32', S(65), S(65), 7), I('s_add_u32', S(66), S(66), S(65)),
          I('v_and_b32', V(4), 31, V(ln)), I('v_mul_u32_u24', V(4), 2304, V(4)), I('v_lshrrev_b32', V(5), 5, V(ln)), I('v_lshl_add_u32', V(4), V(5), 4, V(4)),
          I('s_mov_b32', S(67), '0xffff0000')]
    acc = 160
    for g in range(8):
        for q in range(4):
            o.append(Wait(vm=31 - 4 * g - q + (q if g == 7 else 0)))
            for d in range(4 * q, 4 * q + 4):
                src = V(32 + 16 * g + d)
                if g == 0:
                    o += [I('v_lshlrev_b32', V(acc + 2 * d), 16, src), I('v_and_b32', V(acc + 2 * d + 1), S(67), src)]
                else:
                    o += [I('v_lshlrev_b32', V(6), 16, src), I('v_and_b32', V(7), S(67), src),
                          I('v_add_f32', V(acc + 2 * d), V(acc + 2 * d), V(6)), I('v_add_f32', V(acc + 2 * d + 1), V(acc + 2 * d + 1), V(7))]
            if g == 7:
                pk = 192 + 4 * q
                o += [I('v_cvt_pk_bf16_f32', V(pk + i), V(acc + 8 * q + 2 * i), V(acc + 8 * q + 2 * i + 1)) for i in range(4)]
                o += [I('s_nop', 1), I('v_permlane32_swap_b32', V(pk), V(pk + 2)), I('v_permlane32_swap_b32', V(pk + 1), V(pk + 3)),
                      I('buffer_store_dwordx4', V(pk, 4), V(4), S(SOUT, 4), S(66), mods=f"offen {'offset:%d' % (32 * q) if q else ''}")]
    return o

def build_a(cfg):
    pro = a_prologue(cfg)
    com = []; nrm = []; lst = []
    steps = {}
    for s in range(13): steps[s] = a_step(s, cfg, False); com += steps[s]
    for s in range(13, 18): steps[s] = a_step(s, cfg, False); nrm += steps[s]
    for s in range(13, 24):
        lst += a_step(s, cfg, True)
        if s == 17: lst += stamp(cfg, 3)
    cfg.a_round = com + nrm
    chk = [I('s_cmp_eq_u32', S(sR), 3), I('s_cbranch_scc1', 'L_alast')]
    nxt = [I('s_add_u32', S(sR), S(sR), 1)]
    rs = []
    if cfg.stamps:
        for rr, n in ((1, 5), (3, 6)):
            rs += [I('s_cmp_eq_u32', S(sR), rr), I('s_cbranch_scc0', f'L_nost{n}')] + stamp(cfg, n) + [Label(f'L_nost{n}')]
    cfg.red = reduce_body(cfg)
    prog = pro + [Label("L_around"), Loop(3, com + chk + nrm + nxt + [NoTrace(rs + [I('s_branch', 'L_around')])]), Seq(com + chk), Label("L_alast")] + tail_ptrs(cfg) + lst + stamp(cfg, 4)
    prog += [I('s_waitcnt', 'vmcnt(0)'), I('s_barrier'), I('s_barrier'), Label('L_reduce')] + cfg.red + [Label('L_done')]
    prog += flush(cfg) + [I('s_endpgm'), NoTrace(rare_code())]
    return prog

def wf(k, u): return WF + 8 * (k % 3) + 4 * u
def rd_wq(k):
    o = []
    for u in range(2):
        for v in range(2):
            o.append(I('ds_read_b64_tr_b16', V(wf(k, u) + 2 * v, 2), V(vWl), mods=f"offset:{(k % WQRING) * KWQ + v * 256 + u * 64}", tag=('wqr', u == 0 and v == 0)))
    return o
def rd_xp(k):
    if k < 28: return []
    s = k - 28
    return [I('ds_read_b128', XF(k, w), V(vX0 if s % 2 == 0 else vX1), mods=f"offset:{w * TILE + 64 * (s >> 1)}") for w in range(3)]
def next_half_salu():
    return [I('s_add_u32', S(sEta), S(sEta), 1), I('s_lshr_b32', S(sT0), S(sEta), 1), I('s_add_u32', S(sT0), S(sT0), S(sB)), I('s_and_b32', S(sT0), S(sT0), 3),
            I('s_lshl_b32', S(sT1), S(sG), 2), I('s_add_u32', S(sT0), S(sT0), S(sT1)), I('s_lshl_b32', S(sT0), S(sT0), 8),
            I('s_xor_b32', S(sT1), S(sEta), S(sRot)), I('s_and_b32', S(sT1), S(sT1), 1), I('s_lshl_b32', S(sT1), S(sT1), 7), I('s_add_u32', S(sWqo), S(sT0), S(sT1)),
            I('s_cmp_ge_u32', S(sEta), 8), I('s_cselect_b32', S(SWQ + 2), 0, S(SWQ + 2))]
def dma_wq(k, cfg):
    o = []
    if k % 36 == 0: o += next_half_salu()
    for i in range(2):
        o += [I('s_mov_b32', 'm0', L_WQ + (k % WQRING) * KWQ + i * PIECE),
              I('buffer_load_dwordx4', V(vDQ0 + i), S(SWQ, 4), S(sWqo), mods=f"offen {cfg.wflags} lds", tag=('wq', i == 0))]
    o += [I('s_add_u32', S(sWqo), S(sWqo), 131072)]
    return o
def wq_wait(n): return Wait(vm=lambda op, ctx: op['stream'] == 'wq' and op['grp'] <= grp(ctx, 'wqr') + n)
def epi_tile(u, w):
    a = ACC + 16 * (3 * u + w); o = []
    for e in range(2):
        o += [I('v_mul_f32', V(a + 8 * e + i), S(sC), V(a + 8 * e + i)) for i in range(8)]
        o += [I('v_cvt_pk_bf16_f32', V(PK + 4 * e + k), V(a + 8 * e + 2 * k), V(a + 8 * e + 2 * k + 1)) for k in range(4)]
        o += [I('ds_write_b128', V(vQW), V(PK + 4 * e, 4), mods=f"offset:{w * 8192 + (2 * u + e) * 1024}")]
    return o
def chunks(x, n): return [x[i:i + n] for i in range(0, len(x), n)]

def q_round(cfg):
    slots = []
    epi_hd = lambda: [I('v_add_u32', V(vQW), S(sHalf), V(vQWl)), I('s_xor_b32', S(sHalf), S(sHalf), 4096)]
    for kk in range(72):
        k = kk % 36
        gaps = [[] for _ in range(6)]
        xr = rd_xp((k + 1) % 36)
        for i, x in enumerate(xr): gaps[i].append(x)
        rd = rd_wq((k + 2) % 36)
        if kk % 2 == 0: gaps[1].append(wq_wait(2))
        for i, x in enumerate(rd): gaps[2 + i].append(x)
        wl = dma_wq(k + cfg.la, cfg)
        cut = [i for i, x in enumerate(wl) if x.kind == 'dma'][0] + 1
        for i in range(6):
            u, w = i // 3, i % 3
            acc = V(ACC + 16 * i, 16)
            m = I(MF, acc, V(wf(k, u), 4), XF(k, w), acc if k else '0')
            pre = [Wait(lg=[V(wf(k, 0), 8)] + ([XF(k, x) for x in range(3)] if k >= 28 else []))] if i == 0 else []
            if kk == 36:
                e = (epi_hd() if i == 0 else []) + epi_tile(u, w)
                for c in chunks(e, 7): slots.append([[], None, c, []])
            slots.append([pre, m, gaps[i], wl[:cut] if i == 0 else wl[cut:] if i == 3 else []])
    e = epi_hd() + [I('s_nop', 7)]
    for i in range(6): e += epi_tile(i // 3, i % 3)
    for c in chunks(e, 7): slots.append([[], None, c, []])
    tr = []; flatten(cfg.a_round, tr)
    bpos = [i for i, x in enumerate(tr) if x.kind == 'barrier']
    tot = cost(tr); t0 = tot - cost(tr[:bpos[-1] + 1])
    tgt = [(cost(tr[:p + 1]) + t0) / tot for p in bpos[:-1]]
    sc = [max(32 if sl[1] else 0, (8 if sl[1] else 0) + 4 * sum(weight(x) for x in sl[0] + sl[2])) for sl in slots]
    cum = []; c = 0
    for x in sc: cum.append(c); c += x
    bslot = [0] + [min(range(len(slots)), key=lambda i: abs(cum[i] / c - t)) for t in tgt] + [len(slots)]
    out = []
    for s in range(18):
        seg = slots[bslot[s]:bslot[s + 1]]
        d = dma_after(s, False, cfg, 'Q')
        gl = [list(sl[2]) for sl in seg]
        mfs = [i for i, sl in enumerate(seg) if sl[1] is not None and not sl[3]] or list(range(len(seg)))
        ch = []; cur = []
        for it in d:
            cur.append(it)
            if it.kind == 'dma': ch.append(cur); cur = []
        if cur:
            if ch: ch[-1] += cur
            else: ch.append(cur)
        span = max(1, int(len(mfs) * cfg.qspan))
        for i, cc in enumerate(ch): gl[mfs[(i * span) // len(ch)]] += cc
        seq = barrier(s, 0 if s == 0 else None)
        for sl, g in zip(seg, gl):
            seq += sl[0] + ([sl[1]] if sl[1] is not None else []) + g + sl[3]
        out += fixup(seq)
    return out

def build_q(cfg):
    pro = [I('v_mov_b32', V(vWl), V(pWl)), I('v_lshlrev_b32', V(pT1), 4, V(pLane)), I('v_add_u32', V(vQWl), L_QB, V(pT1)),
           I('v_lshrrev_b32', V(pT1), 3, V(pLane)), I('v_lshlrev_b32', V(pT1), 14, V(pT1)), I('v_and_b32', V(pT2), 7, V(pLane)),
           I('v_lshl_add_u32', V(vDQ0), V(pT2), 4, V(pT1)), I('v_add_u32', V(vDQ1), 8192, V(vDQ0)),
           I('s_lshr_b32', S(sRot), S(sB), 2), I('s_and_b32', S(sRot), S(sRot), 1), I('s_lshl_b32', S(sHalf), S(sRot), 12)]
    a = cfg.a
    pro += [I('v_subrev_u32', V(vDKa), 3 * a * 1024, V(vDK)), I('v_subrev_u32', V(vDVa), 3 * a * 256, V(vDV))]
    pro += setup_kv(0) + [I('s_mov_b32', S(sWoo), 73728)] + head_of(0, sT0) + [I('s_lshl_b32', S(sPq), S(sT0), 8), I('s_mov_b32', S(sEta), 1)]
    def grp0(j):
        o = []
        for k in (2 * j, 2 * j + 1):
            for hh in range(2):
                for i in range(2):
                    o += [I('s_mov_b32', 'm0', wq0_loc(k) + hh * (KWQ - 128) + i * PIECE), I('s_nop', 0),
                          I('buffer_load_dwordx4', V(vDQ0 + i), S(SWQ, 4), S(sPq), mods=f"offen {'offset:128 ' if hh else ''}{cfg.pflags} lds", tag=('pw', k % 2 == 0 and hh == 0 and i == 0))]
            o += [I('s_add_u32', S(sPq), S(sPq), 131072)]
        return o
    def whole(idx):
        ty = SEQ_N[idx][0]; base = L_RING + idx * TILE
        if ty == 'W': return [Mark(('main', True))]
        voff, srd, soff, step = (vDKa, SK, sKo, 1024) if ty == 'K' else (vDVa, SV, sVo, 256)
        o = []
        for i in range(8):
            o += [I('s_mov_b32', 'm0', base + i * PIECE), I('s_add_u32', S(sT2), S(soff), step * i),
                  I('buffer_load_dwordx4', V(voff), S(srd, 4), S(sT2), mods=f"offen {cfg.kvflags} lds", tag=('main', i == 0))]
        return o + [I('s_add_u32', S(soff), S(soff), 8192)]
    def wqpre(k0, k1):
        o = []
        for k in range(k0, k1): o += dma_wq(k, cfg)
        return fixup(o)
    pro += [I('s_lshl_b32', S(sSt), S(sGam), 3), I('s_add_u32', S(sSt), S(sSt), S(sG)), I('s_lshl_b32', S(sSt), S(sSt), 8), I('s_add_u32', S(sSt), S(sSt), FLAG_OFF),
            I('v_lshlrev_b32', V(pT1), 2, V(pLane)), I('v_mov_b32', V(pT2), 0),
            I('buffer_store_dword', V(pT2), V(pT1), S(SWS, 4), S(sSt), mods="offen sc1")]
    for j in range(3): pro += grp0(j)
    pro += [I('s_waitcnt', 'vmcnt(24)'), I('s_barrier')] + stamp(cfg, 2)
    for D in range(4):
        ra, rb = (pA, pB) if D % 2 == 0 else (pC, pD)
        pro += [I('v_add_u32', V(ra), L_RING + 3 * D * TILE, V(pKl0)), I('v_add_u32', V(rb), L_RING + 3 * D * TILE, V(pKl1))]
        for sx in range(8):
            k = 8 * D + sx
            if k >= 28: continue
            for w in range(3):
                pro.append(I('ds_read_b128', XF(k, w), V(ra if sx % 2 == 0 else rb), mods=f"offset:{w * TILE + 64 * (sx >> 1)}"))
    pro += [I('s_waitcnt', 'lgkmcnt(0)'), I('s_barrier')]
    pro += [I('v_add_u32', V(vX0), L_XP, V(pKl0)), I('v_add_u32', V(vX1), L_XP, V(pKl1))]
    RA = cfg.ra
    for j in range(3, RA): pro += grp0(j)
    late = {18 - RA: lambda: whole(0) + whole(1) + wqpre(0, 3) + whole(2) + whole(3), 19 - RA: lambda: whole(4) + wqpre(3, 6) + whole(5) + whole(6),
            20 - RA: lambda: whole(7) + wqpre(6, cfg.la) + whole(8)}
    assert 18 - RA >= 7 and 19 - RA >= 10 and 20 - RA >= 13 and 15 - RA >= 6 and 16 - RA >= 8 and 17 - RA >= 11
    for j in range(18):
        if j + RA < 18: pro += grp0(j + RA)
        if j in late: pro += late[j]()
        pro += [Wait(vm=lambda op, ctx: op['stream'] == 'pw' and op['grp'] <= grp(ctx, 'pbar') + 1), pbar()]
    pro += [wq_wait(2)] + rd_wq(0) + rd_wq(1) + stamp(cfg, 1)
    rnd = [Label("L_qround")] + q_round(cfg) + [I('s_add_u32', S(sR), S(sR), 1), I('s_cmp_lt_u32', S(sR), 3), I('s_cbranch_scc1', 'L_qround')]
    last = []
    for s in range(24):
        last += barrier(s, 0 if s == 0 else None) + fixup(dma_after(s, True, cfg, 'Q'))
    prog = pro + [Loop(3, rnd)] + stamp(cfg, 3) + tail_ptrs(cfg) + last
    prog += [I('s_mov_b32', S(SDBG + 2), 256), I('s_mov_b32', S(SDBG + 3), '0x20000'), I('s_lshl_b32', S(sT0), S(sGam), 3),
             I('v_mov_b32', V(16), 0), I('v_mov_b32', V(17), 1), I('s_mov_b32', S(sT1), 0)] + lane_id(19) + [I('v_lshlrev_b32', V(19), 8, V(19)), I('v_mov_b32', V(20), 1),
             I('s_waitcnt', 'vmcnt(0)'), I('s_barrier'), I('s_mov_b64', 'exec', 1),
             I('buffer_atomic_add', V(17), V(16), S(SDBG, 4), S(sT0), mods="offen sc0"), I('s_waitcnt', 'vmcnt(0)'),
             I('v_readfirstlane_b32', S(sT2), V(17)), I('s_and_b32', S(sT0), S(sSt), hex(0xfffff800)), I('s_and_b32', S(sT2), S(sT2), 7), I('s_cmp_eq_u32', S(sT2), 7), I('s_cbranch_scc0', 'L_poll'),
             I('s_mov_b64', 'exec', 255), I('buffer_store_dword', V(20), V(19), S(SWS, 4), S(sT0), mods="offen sc1"), NoTrace([I('s_branch', 'L_polled')]),
             Label('L_poll'),
             I('buffer_load_dword', V(18), V(16), S(SWS, 4), S(sSt), mods="offen sc1"), I('s_waitcnt', 'vmcnt(0)'),
             I('v_readfirstlane_b32', S(sT2), V(18)), I('s_add_u32', S(sT1), S(sT1), 1),
             I('s_cmp_eq_u32', S(sT2), 1), I('s_cbranch_scc1', 'L_polled'),
             I('s_sleep', cfg.psleep), I('s_cmp_lt_u32', S(sT1), 0x100000), I('s_cbranch_scc1', 'L_poll'),
             Label('L_polled'), I('s_mov_b64', 'exec', -1), I('s_waitcnt', 'vmcnt(0)'), I('s_barrier')] + stamp(cfg, 4)
    prog += [I('s_cmp_lt_u32', S(sG), 3), I('s_cbranch_scc1', 'L_reduce'), NoTrace([I('s_branch', 'L_done')]), Seq(cfg.red)]
    return prog

def common_prologue(cfg):
    a = cfg.a
    o = [I('s_cmp_ge_u32', S(2), 256), I('s_cbranch_scc1', 'L_exit'),
         I('s_load_dwordx16', S(56, 16), S(0, 2), 0), I('s_load_dwordx4', S(72, 4), S(0, 2), 64), I('s_load_dwordx2', S(SWS, 2), S(0, 2), 96)]
    o += stamp(cfg, 0)
    o += [I('v_lshrrev_b32', V(vT0), 6, V(0)), I('v_and_b32', V(pLane), 63, V(0)), I('v_readfirstlane_b32', S(sW), V(vT0)),
          I('s_and_b32', S(sT0), S(2), 7), I('s_lshr_b32', S(sBlk), S(sT0), 2), I('s_and_b32', S(sG), S(sT0), 3),
          I('s_lshr_b32', S(sT1), S(2), 3), I('s_lshr_b32', S(sB), S(sT1), 1),
          I('v_lshrrev_b32', V(vT0), 4, V(pLane)), I('v_and_b32', V(pT1), 15, V(pLane)),
          I('v_xor_b32', V(pT2), V(pT1), V(vT0)), I('v_lshlrev_b32', V(pT2), 4, V(pT2)),
          I('v_mul_u32_u24', V(pX), 1152, V(vT0)), I('v_add_u32', V(pX), V(pX), V(pT2)),
          I('s_mul_i32', S(sT0), S(sW), 8 * 1152), I('v_add_u32', V(pX), S(sT0), V(pX)),
          I('s_mul_i32', S(sWX), S(sW), 2 * PIECE), I('s_mul_i32', S(sT2), S(sB), 110592),
          I('s_mov_b32', S(SX + 2), 1769472), I('s_mov_b32', S(SX + 3), '0x20000'),
          I('s_waitcnt', 'lgkmcnt(0)'), I('s_cmp_eq_u32', S(sBlk), 0),
          I('s_cselect_b32', S(SX), S(56), S(66)), I('s_cselect_b32', S(SX + 1), S(57), S(67))]
    for D in range(5):
        for w in range(3):
            col = 256 * D if D < 4 else 896
            base = L_RING + (3 * D + w) * TILE if D < 4 else L_XP + w * TILE
            for i in range(2):
                o += [I('s_add_u32', 'm0', S(sWX), base + i * PIECE), I('s_add_u32', S(sT0), S(sT2), (32 * w + 4 * i) * 1152 + col),
                      I('buffer_load_dwordx4', V(pX), S(SX, 4), S(sT0), mods=f"offen {cfg.pflags} lds")]
    o += [I('s_and_b32', S(sT1), S(sT1), 1), I('s_lshl_b32', S(sG), S(sG), 1), I('s_add_u32', S(sG), S(sG), S(sT1)),
          I('s_lshl_b32', S(sGam), S(sBlk), 4), I('s_add_u32', S(sGam), S(sGam), S(sB)),
          I('s_mov_b32', S(sR), 0), I('s_mov_b32', S(sT), hex(f2u(cfg.thr))), I('s_mov_b32', S(sC), hex(f2u(1.4426950408889634 / 128 ** 0.5))),
          I('s_mul_i32', S(sWK), S(sW), a * PIECE),
          I('v_lshlrev_b32', V(vDV), 11, V(vT0)), I('v_lshl_add_u32', V(vDV), V(pT1), 4, V(vDV)),
          I('v_lshl_add_u32', V(vDK), V(vT0), 8, V(pT2)),
          I('s_mul_i32', S(sT0), S(sW), a * 1024), I('v_add_u32', V(vDK), S(sT0), V(vDK)),
          I('s_mul_i32', S(sT0), S(sW), a * 256), I('v_add_u32', V(vDV), S(sT0), V(vDV)),
          I('v_lshrrev_b32', V(vT0), 3, V(pLane)), I('v_mul_u32_u24', V(vDW), 9216, V(vT0)), I('v_and_b32', V(vT0), 7, V(pLane)),
          I('v_lshl_add_u32', V(vDW), V(vT0), 4, V(vDW)), I('s_mul_i32', S(sT0), S(sW), a * 1152), I('v_add_u32', V(vDW), S(sT0), V(vDW)),
          I('v_bfe_u32', V(vT0), V(pLane), 2, 3), I('v_mul_u32_u24', V(pKl0), PIECE, V(vT0)),
          I('v_and_b32', V(vT0), 3, V(pLane)), I('v_lshl_add_u32', V(pKl0), V(vT0), 8, V(pKl0)),
          I('v_lshrrev_b32', V(pT1), 5, V(pLane)), I('v_xor_b32', V(vT0), V(vT0), V(pT1)), I('v_xor_b32', V(pT1), 2, V(vT0)),
          I('v_lshl_add_u32', V(pKl1), V(pT1), 4, V(pKl0)), I('v_lshl_add_u32', V(pKl0), V(vT0), 4, V(pKl0)),
          I('v_lshrrev_b32', V(vT0), 5, V(pLane)), I('v_bfe_u32', V(pT1), V(pLane), 2, 2), I('v_lshl_add_u32', V(vT0), V(vT0), 2, V(pT1)),
          I('v_mul_u32_u24', V(pVl), PIECE, V(vT0)), I('v_bfe_u32', V(vT0), V(pLane), 4, 1), I('v_lshl_add_u32', V(pVl), V(vT0), 5, V(pVl)),
          I('v_and_b32', V(vT0), 3, V(pLane)), I('v_lshl_add_u32', V(pVl), V(vT0), 3, V(pVl)),
          I('v_and_b32', V(vT0), 3, V(pLane)),
          I('v_and_b32', V(pT1), 1, V(vT0)), I('v_lshlrev_b32', V(pT1), 1, V(pT1)), I('v_lshrrev_b32', V(vT0), 1, V(vT0)), I('v_or_b32', V(vT0), V(vT0), V(pT1)),
          I('v_lshlrev_b32', V(pWl), 3, V(vT0)),
          I('v_bfe_u32', V(vT0), V(pLane), 4, 1), I('v_lshl_add_u32', V(pWl), V(vT0), 5, V(pWl)),
          I('v_bfe_u32', V(vT0), V(pLane), 5, 1), I('v_lshl_add_u32', V(pWl), V(vT0), 9, V(pWl)),
          I('v_bfe_u32', V(vT0), V(pLane), 3, 1), I('v_lshl_add_u32', V(pWl), V(vT0), 7, V(pWl)),
          I('v_bfe_u32', V(vT0), V(pLane), 2, 1), I('v_mul_u32_u24', V(vT0), PIECE, V(vT0)), I('v_add_u32', V(pWl), V(pWl), V(vT0)),
          I('s_cmp_eq_u32', S(sBlk), 0)]
    for srd, ia, ib, size in ((SK, 58, 68, 67108864), (SV, 60, 70, 67108864), (SWQ, 62, 72, WSIZE), (SWO, 64, 74, 0)):
        o += [I('s_cselect_b32', S(srd), S(ia), S(ib)), I('s_cselect_b32', S(srd + 1), S(ia + 1), S(ib + 1)),
              I('s_mov_b32', S(srd + 2), size), I('s_mov_b32', S(srd + 3), '0x20000')]
    o += [I('s_mov_b32', S(SWS + 2), WS_BYTES), I('s_mov_b32', S(SWS + 3), '0x20000')]
    return o

def hook(it, ctx, vq, lq):
    t = getattr(it, 'tag', None)
    if t is None: return None
    if t[0] == 'mbar':
        if any(o['stream'] == 'main' and o['grp'] <= grp(ctx, 'need') for o in vq): return "main loads outstanding at barrier"
        if grp(ctx, 'main') < grp(ctx, 'need') and grp(ctx, 'main') < 217: return "needed granule not issued"
    if t[0] == 'pbar':
        if any(o['stream'] == 'pw' and o['grp'] <= grp(ctx, 'pbar') for o in vq): return "wq0 loads outstanding at barrier"
    if t[0] == 'wqr':
        if any(o['stream'] == 'wq' and o['grp'] <= grp(ctx, 'wqr') for o in vq): return "wq load outstanding at read"
    if t[0] == 'wq':
        g = grp(ctx, 'wq') - WQRING
        if grp(ctx, 'wqr') < g or any(o['stream'] == 'wqr' and o['grp'] <= g for o in lq): return "wq ring overwrite before read done"
    if t[0] == 'main' and t[1]:
        if grp(ctx, 'main') - NG > grp(ctx, 'free') - 1: return "main ring overwrite too early"
    return None

def strip_lines(t, cfg):
    o = []; inq = False
    for l in t:
        w = l.split()
        op = w[0] if w else ''
        if op == 'L_qround:': inq = True
        if 'qmfma0' in cfg.strip and inq and op.startswith(('v_mfma', 'ds_read', 'v_mul', 'v_cvt')): continue
        if 'dma' in cfg.strip and op.startswith('buffer_load') and 'lds' in w: l = "    s_nop 0\n    s_nop 0"
        if 'mfma' in cfg.strip and op.startswith('v_mfma'): l = "    s_nop 0\n    s_nop 0"
        if 'exp' in cfg.strip and op.startswith('v_exp'): l = "    s_nop 0"
        if 'ds' in cfg.strip and op.startswith('ds_read'): l = "    s_nop 0\n    s_nop 0"
        if 'bar' in cfg.strip and op.startswith('s_barrier'): l = "    s_nop 0"
        if 'rare' in cfg.strip and op.startswith('s_cbranch_vccnz'): l = "    s_nop 0"
        if l.strip() == '; mark': continue
        o.append(l)
    return o

def generate(path, cfg):
    global rare_sites
    rare_sites = []
    com = common_prologue(cfg)
    pa = build_a(cfg); pq = build_q(cfg)
    errs = []
    for nm, prog in (("A", com + pa), ("Q", com + pq)):
        tr = []; flatten(prog, tr); resolve_waits(tr)
        errs += check_trace(tr, nm, hook)
        print(nm, "trace len", len(tr), "est cycles", cost(tr), "barriers", sum(1 for x in tr if x.kind == 'barrier'), file=sys.stderr)
    tr = []; flatten(cfg.a_round, tr); print("A round est", cost(tr), file=sys.stderr)
    for par in range(2):
        errs += check_trace([I(MF, V(O + 48, 16), V(32, 4), V(SB[1 - par], 4), V(O + 48, 16))] + rare_body(par) + [I(MF, V(SB[1 - par], 16), V(32, 4), V(QF, 4), V(NEGM, 16))], "rare")
    if errs:
        for e in errs[:40]: print("ERR", e, file=sys.stderr)
        raise SystemExit(f"{len(errs)} errors")
    a = Asm()
    file_begin(a, [(KNAME, 256, 256, L_END)])
    kernel_begin(a, KNAME)
    t = []
    emit_text(com, t)
    emit_text([I('s_cmp_eq_u32', S(sW), 3), I('s_cbranch_scc1', 'L_qwave')], t)
    emit_text(pa, t)
    t.append("L_qwave:")
    emit_text(pq, t)
    t.append("L_exit:\n    s_endpgm")
    a("\n".join(strip_lines(t, cfg)))
    kernel_desc(a, KNAME, 512, 256)
    open(path, "w").write(a.text())
    import subprocess
    r = subprocess.run(["clang", "-x", "assembler", "-target", "amdgcn-amd-amdhsa", "-mcpu=gfx950", "-c", path, "-o", "chk.o"], capture_output=True, text=True)
    if r.returncode: raise SystemExit(r.stderr[:2000])
    r = subprocess.run(["llvm-objdump", "-h", "chk.o"], capture_output=True, text=True)
    print([l for l in r.stdout.splitlines() if '.text' in l][0].split()[2], file=sys.stderr)

if __name__ == "__main__":
    ap = argparse.ArgumentParser()
    ap.add_argument("out")
    ap.add_argument("--stamps", action="store_true"); ap.add_argument("--cyc", action="store_true"); ap.add_argument("--trace", type=int, default=0)
    ap.add_argument("--kvflags", default="nt"); ap.add_argument("--wflags", default=""); ap.add_argument("--pflags", default=""); ap.add_argument("--woflags", default=""); ap.add_argument("--fflags", default="")
    ap.add_argument("--stflags", default="sc1"); ap.add_argument("--rdflags", default="sc1")
    ap.add_argument("--thr", type=float, default=10.0); ap.add_argument("--strip", default="")
    ap.add_argument("--pf", type=int, default=1); ap.add_argument("--ra", type=int, default=5); ap.add_argument("--a", type=int, default=2)
    ap.add_argument("--dbgst", action="store_true"); ap.add_argument("--psleep", type=int, default=2); ap.add_argument("--la", type=int, default=12); ap.add_argument("--frac", type=float, default=0.3); ap.add_argument("--qspan", type=float, default=0.8)
    x = ap.parse_args()
    cfg = Cfg()
    for k, v in vars(x).items(): setattr(cfg, k, v)
    cfg.clk = 's_memtime' if x.cyc else 's_memrealtime'; cfg.strip = x.strip.split(',')
    generate(x.out, cfg)
```

```python
import re
from collections import deque

def regs_of(op):
    op = op.strip()
    neg = op.lstrip('-')
    m = re.fullmatch(r'([vas])\[(\d+):(\d+)\]', neg)
    if m:
        return [f"{m.group(1)}{i}" for i in range(int(m.group(2)), int(m.group(3)) + 1)]
    if re.fullmatch(r'[vas]\d+', neg):
        return [neg]
    if neg == 'vcc_lo': return ['vcc']
    if neg in ('vcc', 'exec', 'm0', 'scc'):
        return [neg]
    return []

def R(kind, lo, n=1):
    return f"{kind}{lo}" if n == 1 else f"{kind}[{lo}:{lo+n-1}]"
def V(lo, n=1): return R('v', lo, n)
def A(lo, n=1): return R('a', lo, n)
def S(lo, n=1): return R('s', lo, n)

TRANS = ('v_exp_f32', 'v_rcp_f32', 'v_log_f32', 'v_rsq_f32', 'v_sqrt_f32')

class Ins:
    def __init__(self, op, *ops, mods="", tag=None):
        self.op = op; self.ops = [str(o) for o in ops]; self.mods = mods; self.tag = tag
        self.reads = []; self.writes = []
        o = self.ops
        rd = lambda xs: [r for x in xs for r in regs_of(x)]
        if op.startswith('v_mfma'):
            self.kind = 'mfma'; self.writes = rd(o[:1]); self.srcab = rd(o[1:3]); self.srcc = rd(o[3:4]); self.reads = self.srcab + self.srcc
        elif op.startswith('ds_read'):
            self.kind = 'dsr'; self.writes = rd(o[:1]); self.reads = rd(o[1:])
        elif op.startswith('ds_write'):
            self.kind = 'dsw'; self.reads = rd(o)
        elif op.startswith('buffer_load') and 'lds' in mods.split():
            self.kind = 'dma'; self.reads = rd(o) + ['m0']
        elif op.startswith('buffer_load') or op.startswith('global_load'):
            self.kind = 'vld'; self.writes = rd(o[:1]); self.reads = rd(o[1:])
        elif op.startswith('buffer_store') or op.startswith('global_store') or op.startswith('buffer_atomic') or op.startswith('buffer_wbl2') or op.startswith('buffer_inv'):
            self.kind = 'vst'; self.reads = rd(o)
            if op.startswith('buffer_atomic') and 'sc0' in mods.split():
                self.writes = rd(o[:1])
        elif op.startswith('v_permlane') and 'swap' in op:
            self.kind = 'valu'; self.reads = rd(o); self.writes = rd(o)
        elif op.startswith('v_'):
            self.kind = 'trans' if op in TRANS else 'valu'
            self.writes = rd(o[:1]); self.reads = rd(o[1:])
            if op.startswith(('v_fmac', 'v_dot2c', 'v_writelane')): self.reads += self.writes
        elif op in ('s_barrier', 's_nop', 's_endpgm', 's_setprio', 's_sleep', 's_waitcnt'):
            self.kind = op[2:]
        elif op.startswith('s_cbranch') or op in ('s_branch',):
            self.kind = 'branch'
        elif op.startswith('s_cmp') or op.startswith('s_bitcmp'):
            self.kind = 'salu'; self.reads = rd(o); self.writes = ['scc']
        elif op.startswith('s_load') or op in ('s_memtime', 's_memrealtime'):
            self.kind = 'smem'; self.writes = rd(o[:1]); self.reads = rd(o[1:])
        elif op == 's_setpc_b64':
            self.kind = 'branch'; self.reads = rd(o)
        elif op == 's_call_b64':
            self.kind = 'branch'; self.writes = rd(o[:1])
        elif op.startswith('s_'):
            self.kind = 'salu'; self.writes = rd(o[:1]); self.reads = rd(o[1:])
        else:
            raise ValueError(op)
    def text(self):
        s = "    " + self.op
        if self.ops: s += " " + ", ".join(self.ops)
        if self.mods: s += " " + self.mods
        return s
    def states(self):
        return int(self.ops[0]) + 1 if self.op == 's_nop' else 1

class Label:
    kind = 'label'
    def __init__(self, name): self.name = name
    def text(self): return self.name + ":"

class Wait:
    kind = 'wait'
    def __init__(self, lg=None, vm=None):
        self.lg = lg; self.vm = vm; self.nlg = None; self.nvm = None
        self.reads = []; self.writes = []
    def text(self):
        p = []
        if self.nvm is not None: p.append(f"vmcnt({min(self.nvm,63)})")
        if self.nlg is not None: p.append(f"lgkmcnt({min(self.nlg,15)})")
        if not p: return "    s_nop 0"
        return "    s_waitcnt " + " ".join(p)
    def states(self): return 1

class Loop:
    kind = 'loop'
    def __init__(self, count, body): self.count = count; self.body = body

class Seq:
    kind = 'seq'
    def __init__(self, body): self.body = body

class NoTrace:
    kind = 'notrace'
    reads = []; writes = []
    def __init__(self, body): self.body = body

def emit_text(items, out):
    for it in items:
        if it.kind == 'loop' or it.kind == 'notrace': emit_text(it.body, out)
        elif it.kind == 'seq': pass
        else: out.append(it.text())

def flatten(items, out):
    for it in items:
        if it.kind == 'loop':
            for _ in range(it.count): flatten(it.body, out)
        elif it.kind == 'seq': flatten(it.body, out)
        elif it.kind in ('notrace', 'label'): pass
        else: out.append(it)

def bump(it, ctx):
    t = getattr(it, 'tag', None)
    if t is not None and t[1]:
        ctx['cnt'][t[0]] = ctx['cnt'].get(t[0], -1) + 1
def opinfo(it, ctx):
    t = getattr(it, 'tag', None)
    return dict(stream=None if t is None else t[0], grp=None if t is None else ctx['cnt'].get(t[0], -1), regs=set(it.writes))
def grp(ctx, stream): return ctx['cnt'].get(stream, -1)

def resolve_waits(trace):
    vq = []; lq = []; ctx = dict(bar=-1, cnt={})
    for it in trace:
        k = it.kind
        bump(it, ctx)
        if k in ('dma', 'vld', 'vst'):
            vq.append(opinfo(it, ctx))
        elif k in ('dsr', 'dsw'):
            lq.append(set(it.writes))
        elif k == 'wait':
            if it.vm is not None:
                if isinstance(it.vm, int): n = it.vm
                else:
                    n = None
                    for i in range(len(vq) - 1, -1, -1):
                        if it.vm(vq[i], ctx): n = len(vq) - 1 - i; break
                if n is not None:
                    it.nvm = n if it.nvm is None else min(it.nvm, n)
                    vq = vq[max(0, len(vq) - n):] if n else []
            if it.lg is not None:
                if isinstance(it.lg, int): n = it.lg
                else:
                    need = set(r for x in it.lg for r in regs_of(x)); n = None
                    for i in range(len(lq) - 1, -1, -1):
                        if lq[i] & need: n = len(lq) - 1 - i; break
                if n is not None:
                    it.nlg = n if it.nlg is None else min(it.nlg, n)
                    lq = lq[max(0, len(lq) - n):] if n else []
        elif k == 'waitcnt':
            t = " ".join(it.ops)
            m = re.search(r'vmcnt\((\d+)\)', t)
            if m: n = int(m.group(1)); vq = vq[max(0, len(vq) - n):] if n else []
            m = re.search(r'lgkmcnt\((\d+)\)', t)
            if m: n = int(m.group(1)); lq = lq[max(0, len(lq) - n):] if n else []

def check_trace(trace, name="", hook=None):
    errs = []
    lq = []; vq = []; sm = set(); ctx = dict(cnt={}); lastscc = ''
    hist = deque(maxlen=24)
    def err(i, msg): errs.append(f"{name}[{i}] {trace[i].text().strip()}: {msg}")
    for i, it in enumerate(trace):
        k = it.kind
        rw = set(it.reads) | set(it.writes)
        bump(it, ctx)
        if hook is not None:
            m = hook(it, ctx, vq, lq)
            if m: err(i, m)
        if k not in ('wait', 'waitcnt'):
            for q, nm in ((lq, 'lds'), (vq, 'vmem')):
                for w in q:
                    w = w['regs']
                    if w & rw and not (k == 'vld' and nm == 'vmem' and not (w & set(it.reads))): err(i, f"touches {sorted(w & rw)[:3]} with {nm} load outstanding")
            if sm & rw and k != 'smem': err(i, f"touches {sorted(sm & rw)} with smem outstanding")
        dist = 0
        for p in reversed(hist):
            pw = set(p.writes); pk = p.kind
            need = 0
            if pk == 'mfma':
                npass = 8 if '32x32' in p.op else 4
                long_ = {8: 12, 4: 8}[npass]; ovl = {8: 10, 4: 6}[npass]; war = {8: 7, 4: 3}[npass]
                if k == 'mfma':
                    if pw & set(it.srcab): need = long_
                    elif pw & set(it.srcc) and not (it.srcc == p.writes and it.op == p.op): need = ovl
                    elif pw & set(it.writes) and not (it.srcc == p.writes): need = ovl
                elif k in ('valu', 'trans', 'dsr', 'dsw', 'vld', 'vst', 'dma'):
                    if pw & rw: need = long_
                    if k in ('valu', 'trans') and set(p.srcc) & set(it.writes): need = max(need, war)
            elif pk in ('valu', 'trans'):
                vw = set(x for x in pw if x[0] in 'va' and x != 'vcc'); sw = pw - vw
                if k == 'mfma' and vw & set(it.reads): need = 2
                if pk == 'trans' and k in ('valu',) and vw & set(it.reads): need = max(need, 1)
                if it.kind == 'valu' and it.op.startswith('v_permlane') and vw & set(it.reads): need = max(need, 2)
                if it.kind == 'valu' and it.op.startswith(('v_readfirstlane', 'v_readlane')) and vw & set(it.reads): need = max(need, 1)
                if k in ('valu', 'trans') and sw & set(it.reads): need = max(need, 2)
                if k in ('dma', 'vld', 'vst') and sw & set(it.reads): need = max(need, 5)
            elif pk == 'salu':
                if 'm0' in pw and k == 'dma': need = 1
            elif pk == 'vst':
                if ('x4' in p.op or 'x3' in p.op) and k in ('valu', 'trans', 'dsr', 'vld') and set(regs_of(p.ops[0])) & set(it.writes): need = 2
            if need > dist: err(i, f"needs {need} wait states after '{p.text().strip()}', has {dist}")
            dist += p.states()
            if dist > 20: break
        hist.append(it)
        op = getattr(it, 'op', '')
        if op.startswith(('s_cselect', 's_cbranch_scc')) and not lastscc.startswith(('s_cmp', 's_bitcmp')): err(i, f"scc last written by {lastscc}")
        if op.startswith(('s_cmp', 's_bitcmp', 's_add', 's_sub', 's_and', 's_or', 's_xor', 's_lshl', 's_lshr', 's_ashr', 's_bfe', 's_min', 's_max', 's_not')): lastscc = op
        if k in ('dsr', 'dsw'): lq.append(opinfo(it, ctx))
        elif k in ('dma', 'vld', 'vst'): vq.append(opinfo(it, ctx))
        elif k == 'smem': sm |= set(it.writes)
        elif k == 'wait':
            if it.nvm is not None: n = min(it.nvm, 63); vq = vq[max(0, len(vq) - n):] if n else []
            if it.nlg is not None:
                n = min(it.nlg, 15); lq = lq[max(0, len(lq) - n):] if n else []
                if n == 0: sm = set()
        elif k == 'waitcnt':
            t = " ".join(it.ops)
            m = re.search(r'vmcnt\((\d+)\)', t)
            if m: n = int(m.group(1)); vq = vq[max(0, len(vq) - n):] if n else []
            m = re.search(r'lgkmcnt\((\d+)\)', t)
            if m:
                n = int(m.group(1)); lq = lq[max(0, len(lq) - n):] if n else []
                if n == 0: sm = set()
    return errs

def interleave(mfmas, gaps):
    out = []
    for j, m in enumerate(mfmas):
        if isinstance(m, list): out += m
        else: out.append(m)
        out += gaps[j]
    return out


def weight(it):
    if it.kind == 'trans': return 2
    if it.kind in ('label', 'mark'): return 0
    if getattr(it, 'op', '') == 's_nop': return it.states()
    return 1

def spread(gaps, items, g0, g1):
    n = g1 - g0 + 1
    tot = sum(weight(i) for i in items) + sum(sum(weight(i) for i in gaps[g]) for g in range(g0, g1 + 1))
    target = tot / n
    g = g0
    for it in items:
        while g < g1 and sum(weight(i) for i in gaps[g]) + weight(it) / 2.0 > target: g += 1
        gaps[g].append(it)

def cost(items):
    t = 0; mf_free = 0; vec_free = 0
    for it in items:
        if it.kind in ('label', 'mark'): continue
        if it.kind == 'mfma':
            t = max(t, mf_free); mf_free = t + (32 if '32x32' in it.op else 16); vec_free = t + 8; t += 4
        elif it.kind in ('salu', 'wait', 'waitcnt', 'barrier', 'branch', 'nop', 'smem'): t += 4 * weight(it)
        else: t = max(t, vec_free) + 4 * weight(it)
    return max(t, mf_free)

class Mark:
    kind = 'mark'
    def __init__(self, tag): self.tag = tag; self.reads = []; self.writes = []
    def text(self): return "    ; mark"
    def states(self): return 0

def spread_even(gaps, items, g0, g1):
    chunks = []; cur = []
    for it in items:
        cur.append(it)
        if it.kind == 'dma': chunks.append(cur); cur = []
    if cur:
        if chunks: chunks[-1] += cur
        else: chunks.append(cur)
    n = g1 - g0 + 1
    for i, c in enumerate(chunks):
        gaps[g0 + (i * n) // len(chunks)] += c

SCALAR = ('salu', 'wait', 'waitcnt', 'barrier', 'branch', 'smem', 'mark', 'notrace', 'label')
def vweight(items):
    v = sum(weight(i) for i in items if i.kind not in SCALAR)
    s = sum(1 for i in items if i.kind in SCALAR and i.kind not in ('mark', 'label'))
    return v + max(0, s - 1)
def dma_chunks(items):
    ch = []; cur = []
    for it in items:
        cur.append(it)
        if it.kind in ('dma', 'vst'):
            while len(cur) > 3: ch.append([cur.pop(0)])
            ch.append(cur); cur = []
    for it in cur: ch.append([it])
    return ch
def schedule(gaps, queues, cap=2.0):
    qs = [([c if isinstance(c, list) else [c] for c in q], lo, hi) for q, lo, hi in queues if q]
    B = cap
    while True:
        g2 = [list(g) for g in gaps]
        pos = [0] * len(qs); ok = True; credit = 0.0
        for g in range(len(g2)):
            credit = min(credit, 0.99) + B - vweight(g2[g])
            while True:
                c = [i for i, (q, lo, hi) in enumerate(qs) if pos[i] < len(q) and lo <= g]
                if not c: break
                i = min(c, key=lambda i: qs[i][2])
                ch = qs[i][0][pos[i]]
                w = vweight(g2[g] + ch) - vweight(g2[g])
                if w > credit + 0.5 and g < qs[i][2]: break
                if g == qs[i][2] and w > credit + 0.5: ok = False
                g2[g] += ch; credit -= w; pos[i] += 1
            if not ok: break
        if ok or B > 8:
            if not ok: raise SystemExit("schedule failed " + str([(len(q), lo, hi) for q, lo, hi in qs]) + str(len(gaps)) + str([vweight(g) for g in gaps]))
            for g in range(len(gaps)): gaps[g][:] = g2[g]
            return B
        B += 0.05
```

```python
import sys, argparse, struct
from asmlib import *
from fw import *

I = Ins
NG = 10; PIECE = 1088; PT = 1056; TILE = 8704
L_WQ = 0; L_RING = 26112; L_QB = L_RING + NG * TILE; L_XP = L_QB + 24576; L_END = L_XP + 26112
assert L_END == 163840
KWQ = 4 * PT; WQRING = 6; NKS = 18; XREG = 14
PART_BYTES = 256 * 27 * 4096
FLAG_OFF = PART_BYTES; WS_BYTES = PART_BYTES + 256 * 256
WSIZE = 4718592
STAMP_OFF = 64 * 1024 * 1024
MF = 'v_mfma_f32_16x16x32_bf16'
sW = 3; SK = 4; SV = 8; SWO = 12; SWQ = 16; SWS = 20; SX = 24
sR = 28; sLC = 29; sRET = 30
sKo = 32; sVo = 33; sWoo = 34; sWqo = 35; sPf = 38; sMask = 65; sPf0 = 66; sWK = 40; sWT = 39; sHr = 41; sWX = 42
sB = 43; sG = 44; sBlk = 45; sT = 46; sC = 47; sT0 = 48; sT1 = 49; sT2 = 50; sEta = 51; sRot = 52; sHalf = 53; sSt = 54; sGam = 55
SOUT = 56; SDBG = 60; sPq = 29; sXb = 36; sWP = 37; SPF = 76
sST = 80
vDK = 7; vDV = 8; vDW = 9; vT0 = 10
vK = (1, 4); vV = (2, 5); vW = (3, 6)
vL = (11, 12); vMx = 13; vQl = 0; vTr0 = 14; vTr1 = 15
FB = 16; NEGM = 48; vM = (56, 57); vT1 = 58; SB = (64, 80); QF = 96; OB = 128; O = 160
def OUT(nt, ct):
    t = 2 * nt + ct
    return A(4 * t, 4) if t < 64 else V(224 + 4 * (t - 64), 4)
pLane = 100; pKl = 101; pVl = 102; pWol = 103; pWl = 104; pX = 105; pT1 = 106; pT2 = 107; pA = 108; pB = 109; pC = 110; pD = 111; pX2 = 112; pDQ = 113; pLin = 114
vWl = 1; vX0 = 2; vQWl = 4; vQW = 5; vDQ = (11, 12, 3, 6); vDKa = 13; vDVa = 14; vDWs = 15
WF = 16; XT = 48; PK = 72; ACC = 80; XR = 176
def XF(k, rt):
    if k >= XREG: return V(XT + 4 * rt, 4)
    n = 6 * k + rt
    return A(4 * n, 4) if n < 64 else V(XR + 4 * (n - 64), 4)

def f2u(x): return struct.unpack('<I', struct.pack('<f', x))[0]
class Cfg: pass

def step_parts(s):
    if s == 0: return [('K', 0), ('W', 0)]
    if s <= 15: return [('K', s), ('W', s), ('V', s - 1)]
    if s == 16: return [('W', 16), ('V', 15)]
    if s == 17: return [('W', 17)]
    return [('F', 3 * (s - 18) + e) for e in range(3)]
def start(s): return sum(len(step_parts(x)) for x in range(s))
SEQ_N = [g for s in range(18) for g in step_parts(s)]
SEQ_L = [g for s in range(24) for g in step_parts(s)]
def gran(idx, last):
    if last: return SEQ_L[idx] if idx < len(SEQ_L) else None
    return SEQ_N[idx % 50]
NGE = [10]
def issue_range(s):
    hi = start(s) + NGE[0] - 1
    n = len(step_parts(s - 1)) if s else 1
    return range(hi - n + 1, hi + 1)

def head_of(plus, dst):
    o = [I('s_add_u32', S(sT0), S(sR), S(sHr))]
    if plus: o.append(I('s_add_u32', S(sT0), S(sT0), plus))
    return o + [I('s_and_b32', S(sT0), S(sT0), 3), I('s_lshl_b32', S(sT1), S(sG), 2), I('s_add_u32', S(dst), S(sT0), S(sT1))]
def setup_kv(plus):
    return head_of(plus, sT0) + [I('s_lshl_b32', S(sT1), S(sB), 5), I('s_add_u32', S(sT0), S(sT0), S(sT1)), I('s_lshl_b32', S(sKo), S(sT0), 17), I('s_mov_b32', S(sVo), S(sKo))]
def setup_wo():
    return head_of(0, sT0) + [I('s_mul_i32', S(sWoo), S(sT0), 147456), I('s_mov_b32', S(SWO + 2), WSIZE)]

jitc = [0]
def dma_gran(idx, last, cfg, role, r0=False):
    g = gran(idx, last)
    if g is None: return []
    ty, n = g
    if r0 and ty == 'W' and idx < 50:
        return [Mark(('main', True))]
    a = cfg.a
    cnt = a if role == 'A' else 8 - 3 * a
    o = []
    if idx >= 50 and g == ('K', 0): o += setup_kv(1)
    if idx >= 50 and g in (('W', 0), ('F', 0)): o += setup_wo()
    voff, srd, soff, step, fl = {'K': (vDK, SK, sKo, 1024, cfg.kvflags), 'V': (vDV, SV, sVo, 256, cfg.kvflags)}.get(ty, (vDW, SWO, sWoo, 1152, cfg.woflags if ty == 'W' else cfg.fflags))
    base = L_RING + (idx % NG) * TILE
    ps, sw = (PIECE, sWK) if ty == 'K' else (PT, sWT)
    for i in range(cnt):
        off = step * i; so = soff
        if off > 4095:
            o += [I('s_add_u32', 'm0', S(sw), base + i * ps), I('s_add_u32', S(sT2), S(soff), off)]; so = sT2; off = 0
        else:
            o += [I('s_add_u32', 'm0', S(sw), base + i * ps - off)]
        o.append(I('buffer_load_dwordx4', V(voff), S(srd, 4), S(so), mods=f"offen {'offset:%d ' % off if off else ''}{fl} lds", tag=('main', i == 0)))
    if cnt == 0: o.append(Mark(('main', True)))
    if ty in 'KV': o.append(I('s_add_u32', S(soff), S(soff), 8192))
    elif n % 2 == 0: o.append(I('s_add_u32', S(soff), S(soff), 73728))
    else: o.append(I('s_sub_u32', S(soff), S(soff), 73600))
    return o
def dma_after(s, last, cfg, role, r0=False):
    o = []
    for idx in issue_range(s): o += dma_gran(idx, last, cfg, role, r0)
    return o

def fixup(seq):
    out = []
    for it in seq:
        if it.kind == 'dma' and out and out[-1].kind == 'salu' and 'm0' in out[-1].writes:
            m = out[-1]
            p = out[-2] if len(out) > 1 else None
            if p is not None and p.kind in ('valu', 'trans', 'dsr', 'dsw', 'mfma', 'salu') and not (set(p.writes) & set(m.reads)) and 'm0' not in p.writes and 'm0' not in p.reads and not (p.kind == 'salu' and ('scc' in p.writes or p.op.startswith('s_cselect'))):
                out[-2], out[-1] = m, p
            else:
                out.append(I('s_nop', 0))
        out.append(it)
    return out
def front(gaps):
    for g in gaps:
        for i, it in enumerate(g):
            if it.kind in ('valu', 'trans'): continue
            if i and it.kind in ('salu', 'dsr', 'dma', 'wait'): g.insert(0, g.pop(i))
            break
    return gaps
def merge(a, b, ra=1, rb=1):
    a = list(a); b = list(b); o = []
    while a or b:
        o += a[:ra]; a = a[ra:]
        o += b[:rb]; b = b[rb:]
    return o

def barrier(s, lg, wq_ahead=None):
    def pred(op, ctx):
        if op['stream'] == 'main' and op['grp'] <= grp(ctx, 'need'): return True
        return False
    nfree = len(step_parts(s - 1)) if s else 1
    return [Mark(('need', True)) for _ in step_parts(s)] + [Wait(lg=lg, vm=pred), I('s_barrier', tag=('mbar', True))] + [Mark(('free', True)) for _ in range(nfree)]

def stamp(cfg, n): return [I(cfg.clk, S(sST + 2 * n, 2))] if cfg.stamps else []
def trace_init(cfg):
    return [I('s_mov_b32', S(100), 0), I('s_mov_b32', S(101), 0), I('v_mov_b32', V(vTr0), 0), I('v_mov_b32', V(vTr1), 0), I('s_memrealtime', S(96, 2)), I('s_memtime', S(98, 2)), I('s_waitcnt', 'lgkmcnt(0)')]
def trace_pt(cfg):
    if not cfg.trace: return []
    return [I('s_mov_b32', 'm0', S(101)), I('s_nop', 0), I('v_writelane_b32', V(vTr0), S(96), 'm0'), I('v_writelane_b32', V(vTr1), S(98), 'm0'), I('s_memrealtime', S(96, 2)), I('s_memtime', S(98, 2)),
            I('s_add_u32', S(100), S(100), 1), I('s_lshr_b32', S(101), S(100), 1) if cfg.trace == 2 else I('s_min_u32', S(101), S(100), 63)]
def lane_id(dst): return [I('v_mbcnt_lo_u32_b32', V(dst), -1, 0), I('v_mbcnt_hi_u32_b32', V(dst), -1, V(dst))]
def flush(cfg):
    o = []
    if cfg.dbgst:
        o += [I('s_waitcnt', 'vmcnt(0)'), I(cfg.clk, S(sST + 14, 2)), I('s_waitcnt', 'lgkmcnt(0)'), I('s_mov_b32', S(SDBG + 2), 256), I('s_mov_b32', S(SDBG + 3), '0x20000'),
              I('v_mov_b32', V(vT0), 0), I('s_cmp_eq_u32', S(sW), 0), I('s_cbranch_scc0', 'L_nodbg'), I('s_mov_b64', 'exec', 1), I('s_not_b32', S(sST), S(sST))]
        for j, n in enumerate((0, 1, 5, 6, 3, 4, 7)):
            o += [I('v_mov_b32', V(32 + j), S(sST + 2 * n)), I('buffer_atomic_umax', V(32 + j), V(vT0), S(SDBG, 4), 0, mods=f"offen offset:{8 * j + 4}")]
        o += [Label('L_nodbg')]
        return o
    if cfg.trace:
        o += [I('s_lshl_b32', S(sT0), S(2), 2), I('s_add_u32', S(sT0), S(sT0), S(sW)), I('s_lshl_b32', S(sT0), S(sT0), 9), I('s_add_u32', S(sT0), S(sT0), STAMP_OFF + 131072),
              I('s_mov_b32', S(SWS + 2), STAMP_OFF + 131072 + 524288)] + lane_id(vT0) + [I('v_lshlrev_b32', V(vT0), 2, V(vT0)),
              I('buffer_store_dword', V(vTr0), V(vT0), S(SWS, 4), S(sT0), mods="offen"), I('buffer_store_dword', V(vTr1), V(vT0), S(SWS, 4), S(sT0), mods="offen offset:256")]
    if cfg.stamps:
        o += [I('s_waitcnt', 'vmcnt(0)'), I(cfg.clk, S(sST + 14, 2)), I('s_waitcnt', 'vmcnt(0) lgkmcnt(0)'),
             I('s_lshl_b32', S(sT0), S(2), 2), I('s_add_u32', S(sT0), S(sT0), S(sW)), I('s_lshl_b32', S(sT0), S(sT0), 6),
             I('s_add_u32', S(sT0), S(sT0), STAMP_OFF), I('s_mov_b32', S(SWS + 2), STAMP_OFF + 65536), I('v_mov_b32', V(vT0), 0), I('s_mov_b64', 'exec', 1)]
        for q in range(4):
            o += [I('v_mov_b32', V(32 + 4 * q + i), S(sST + 4 * q + i)) for i in range(4)]
            o += [I('buffer_store_dwordx4', V(32 + 4 * q, 4), V(vT0), S(SWS, 4), S(sT0), mods=f"offen offset:{16 * q}")]
    return o

def fb(n): return FB + 4 * (n % 8)
def FBr(n): return V(fb(n), 4)
def rd_frag(idx, ty, i, n):
    pos = idx % NG
    hi = int(pos >= 5)
    base = (pos - 5 * hi) * TILE
    if ty == 'K':
        kt, ks = i // 4, i % 4
        return [I('ds_read_b128', V(fb(n), 4), V(vK[hi]), mods=f"offset:{base + kt * 4 * PIECE + ks * 64}")]
    if ty == 'V':
        return [I('ds_read_b64_tr_b16', V(fb(n) + 2 * u, 2), V(vV[hi]), mods=f"offset:{base + u * 512 + i * 32}") for u in range(2)]
    kq, nt = i // 4, i % 4
    return [I('ds_read_b64_tr_b16', V(fb(n) + 2 * u, 2), V(vW[hi]), mods=f"offset:{base + kq * 512 + u * 256 + nt * 32}") for u in range(2)]
def rd_Q(i): return [I('ds_read_b128', V(QF + 4 * i, 4), V(vQl), mods=f"offset:{1024 * i}")]
def mf_part(g, i, n, ct):
    ty, x = g
    if ty == 'K':
        kt, ks = i // 4, i % 4
        s = V(SB[x % 2] + 8 * ct + 4 * kt, 4)
        return I(MF, s, FBr(n), V(QF + 8 * ks + 4 * ct, 4), s if ks else ('0' if x == 0 else V(NEGM + 4 * ct, 4)))
    if ty == 'V':
        d = V(O + 32 * ct + 4 * i, 4)
        return I(MF, d, FBr(n), V(SB[x % 2] + 8 * ct, 4), '0' if x == 0 else d)
    kq, nt = i // 4, i % 4
    d = OUT(4 * (x // 2) + nt, ct)
    return I(MF, d, FBr(n), V(OB + 16 * (x % 2) + 8 * kq + 4 * ct, 4), d)

def softmax_list(g):
    o = []
    for ct in range(2):
        s = SB[g % 2] + 8 * ct
        for k in range(4):
            o += [I('v_exp_f32', V(s + 2 * k), V(s + 2 * k)), I('v_exp_f32', V(s + 2 * k + 1), V(s + 2 * k + 1)),
                  I('v_add_f32', V(vL[ct]), V(vL[ct]), V(s + 2 * k)), I('v_add_f32', V(vL[ct]), V(vL[ct]), V(s + 2 * k + 1)),
                  I('v_cvt_pk_bf16_f32', V(s + k), V(s + 2 * k), V(s + 2 * k + 1))]
    return o
def softmax_split(g):
    a = []; b = []
    for ct in range(2):
        s = SB[g % 2] + 8 * ct
        E = [I('v_exp_f32', V(s + i), V(s + i)) for i in range(8)]
        Ad = [I('v_add_f32', V(vL[ct]), V(vL[ct]), V(s + i)) for i in range(8)]
        C = [I('v_cvt_pk_bf16_f32', V(s + k), V(s + 2 * k), V(s + 2 * k + 1)) for k in range(4)]
        a += E[0:3] + Ad[0:2] + [C[0], E[3], E[4]] + Ad[2:4] + [C[1], E[5], E[6], C[2], E[7]] + [Ad[4], C[3]]
        b += Ad[5:8]
    return a, b
def max_chain(dst, s, n):
    o = [I('v_max3_f32', V(dst), V(s), V(s + 1), V(s + 2))]
    for i in range(3, n - 1, 2): o.append(I('v_max3_f32', V(dst), V(dst), V(s + i), V(s + i + 1)))
    o.append(I('v_max_f32', V(dst), V(dst), V(s + n - 1)))
    return o
def max_list(g): return max_chain(vMx, SB[g % 2], 16)
def xreduce(op, r0, r1):
    o = []
    for sw in ('v_permlane32_swap_b32', 'v_permlane16_swap_b32'):
        o += [I('v_mov_b32', V(vT0), V(r0)), I('v_mov_b32', V(vT1), V(r1)), I('s_nop', 0), I(sw, V(vT0), V(r0)), I(sw, V(vT1), V(r1)),
              I(op, V(r0), V(r0), V(vT0)), I(op, V(r1), V(r1), V(vT1))]
    return o
def row_max(par): return merge(max_chain(vM[0], SB[par], 8), max_chain(vM[1], SB[par] + 8, 8)) + xreduce('v_max_f32', vM[0], vM[1])
def norm_part(kq, src, dst):
    o = []
    for ct in range(2):
        b = O + 32 * ct + 8 * kq
        o += [I('v_mul_f32', V(b + i), src(ct), V(b + i)) for i in range(8)]
        o += [I('v_cvt_pk_bf16_f32', V(dst + 8 * kq + 4 * ct + k), V(b + 2 * k), V(b + 2 * k + 1)) for k in range(4)]
    return o

def store_q(p, q, cfg):
    ct, hf = q // 2, q % 2
    tmp = O + 16 * q; pk = tmp + 8
    o = []
    for j in range(2):
        t = 2 * (4 * p + 2 * hf + j) + ct
        for k in range(2):
            if t < 64:
                o += [I('v_accvgpr_read_b32', V(tmp + 4 * j + 2 * k + e), A(4 * t + 2 * k + e)) for e in range(2)]
                src = tmp + 4 * j + 2 * k
            else: src = 224 + 4 * (t - 64) + 2 * k
            o += [I('v_cvt_pk_bf16_f32', V(pk + 2 * j + k), V(src), V(src + 1))]
    o.append(I('buffer_store_dwordx4', V(pk, 4), V(vQl), S(SWS, 4), S(sSt), mods=f"offen {'offset:%d ' % (1024 * q) if q else ''}{cfg.stflags}"))
    if q == 3: o.append(I('s_add_u32', S(sSt), S(sSt), 32768))
    return o
def store_pair(p, cfg): return [x for q in range(4) for x in store_q(p, q, cfg)]

rare_sites = []
def split_dma(d, frac):
    idx = [i for i, x in enumerate(d) if x.kind == 'dma']
    if len(idx) < 2: return d, []
    n = max(1, int(len(idx) * frac + 0.5))
    c = idx[n - 1] + 1
    return d[:c], d[c:]

def a_step(s, cfg, last, r0=False):
    def real(x, first_round):
        return [(start(x) + e, g) for e, g in enumerate(step_parts(x % 18 if not last else x)) if not (first_round and g[0] == 'W')]
    parts = real(s, r0); L = 8 * len(parts)
    final = last and s == 23
    nxt = s + 1 if (last or s < 17) else 0
    nparts = real(s + 1, r0 and s < 17)
    FR = cfg.frac
    head = split_dma(dma_after(s, last, cfg, 'A', r0), FR)[1]
    tail = []; nreads = [[] for _ in range(8)]
    if not final:
        tail = split_dma(dma_after(s + 1, last, cfg, 'A', r0), FR)[0]
        if nparts:
            nreads = [rd_frag(nparts[0][0], nparts[0][1][0], i, i) + (rd_Q(i) if nxt == 0 else []) for i in range(8)]
    name = f"s{s}{'l' if last and s >= 13 else ''}{'z' if r0 else ''}"
    nl = lambda kq: norm_part(kq, lambda ct: V(vL[ct]), OB)
    if L == 0:
        seq = fixup(head) + nl(0) + barrier(nxt, 0) + trace_pt(cfg) + [x for r in nreads for x in r] + fixup(merge(tail, nl(1) + nl(2) + nl(3), 1, 4)) + [I('s_nop', 0)]
        return [I('s_nop', 4)] + seq
    M = 2 * L
    mf = [mf_part(parts[n // 16][1], (n // 2) % 8, n // 2, n % 2) for n in range(M)]
    gaps = [[] for _ in range(M)]
    for n in range(8, L): gaps[2 * (n - 8) + 1] += rd_frag(parts[n // 8][0], parts[n // 8][1][0], n % 8, n)
    b = L - 6
    if not final:
        gaps[2 * b + 1] += barrier(nxt, 0) + trace_pt(cfg)
        for i in range(8): gaps[2 * (b + max(0, i - 2)) + 1 + (0 if i != 2 else 1 if len(nreads[2]) > 1 else 0)] += nreads[i]
    hq = (dma_chunks(head), 0, 2 * b - 1); tq = (dma_chunks(tail), 2 * b + 2, M - 1)
    post = []; pre = []; qs = []
    red = xreduce('v_add_f32', vL[0], vL[1]) + [I('v_rcp_f32', V(vL[0]), V(vL[0])), I('v_rcp_f32', V(vL[1]), V(vL[1]))]
    if s == 0:
        qs.append(([I('v_mov_b32', V(vL[0]), 0), I('v_mov_b32', V(vL[1]), 0)], 0, 15))
        x = row_max(0)
        x += [I('v_sub_f32', V(NEGM + i), 0, V(vM[i // 4])) for i in range(8)] + [I('v_sub_f32', V(SB[0] + i), V(SB[0] + i), V(vM[i // 8])) for i in range(16)]
        if r0: post = [I('s_nop', 6)] + x + [I('s_nop', 0)]
        else:
            k = cfg.k0
            qs.append((x[:k], 19, 31)); post = x[k:] + [I('s_nop', 0)]
    elif s <= 15:
        sa, sb = softmax_split(s - 1)
        mx = max_list(s) + [I('v_cmp_lt_f32', 'vcc', S(sT), V(vMx))]
        if r0: qs += [(sa, 0, 14), (sb + mx, 19, 31)]
        else: qs += [(sa, 0, 30), (merge(sb, mx), 32, 47)]
        post = [I('s_cbranch_vccnz', f"L_rare_{name}"), Label(f"L_back_{name}")]
        rare_sites.append((name, s % 2))
    elif s == 16:
        sa, sb = softmax_split(15)
        if r0:
            pre = sa + [I('s_nop', 0)]; qs.append((sb + red, 0, 15))
        else: qs += [(sa, 0, 14), (sb + red, 16, 31)]
    elif s == 17:
        qs.append((nl(0) + nl(1), 3, 15))
        post = nl(2) + nl(3) + [I('s_nop', 0)]
        if last: post = lane_id(vQl) + [I('v_lshlrev_b32', V(vQl), 4, V(vQl))] + post
    else:
        for e, (_, (ty, x)) in enumerate(parts):
            xp = x - 1
            if xp >= 1 and xp % 2 == 1:
                sp = store_pair(xp // 2, cfg)
                if e < 2: qs.append((sp, 16 * e + 3, 16 * e + 31))
                else:
                    k = len(sp) if final else len(sp) // 2
                    qs.append((sp[:k], 16 * e + 3, M - 1))
            elif e == 0 and xp >= 2:
                sp = store_pair(xp // 2 - 0 - 1 + 0, cfg)
                qs.append((sp[len(sp) // 2:], 0, 15))
        if final: post = [I('s_nop', 7)] + store_pair(8, cfg)
    grp_ = []; cur = []
    for c in hq[0]:
        cur += c
        if any(x.kind == 'dma' for x in c): grp_.append(cur); cur = []
    if cur:
        if grp_: grp_[-1] += cur
        else: grp_.append(cur)
    h0 = int(b * cfg.hstart); span = max(1, int(b * cfg.hspan) - h0)
    for i, c in enumerate(grp_): gaps[2 * (h0 + (i * span) // len(grp_))] += c
    schedule(gaps, qs + [tq])
    front(gaps)
    for n in range(0, L, 4):
        if n > b and not final: break
        cov = [FBr(x) for x in range(n, min(n + 4, (b + 1) if (n + 4 > b + 1 and not final) else n + 4))]
        if s == 0 and n == 0: cov += [V(QF, 32)]
        mf[2 * n] = [Wait(lg=cov), mf[2 * n]]
    return pre + fixup(interleave(mf, gaps)) + post

def rare_body(par):
    s = SB[par]
    o = [I('s_nop', 7)] + row_max(par)
    for ct in range(2):
        o += [I('v_max_f32', V(vM[ct]), 0, V(vM[ct]))]
        o += [I('v_sub_f32', V(s + 8 * ct + i), V(s + 8 * ct + i), V(vM[ct])) for i in range(8)]
        o += [I('v_sub_f32', V(NEGM + 4 * ct + i), V(NEGM + 4 * ct + i), V(vM[ct])) for i in range(4)]
        o += [I('v_sub_f32', V(vT0), 0, V(vM[ct])), I('v_exp_f32', V(vT0), V(vT0)), I('s_nop', 0), I('v_mul_f32', V(vL[ct]), V(vL[ct]), V(vT0))]
        o += [I('v_mul_f32', V(O + 32 * ct + i), V(O + 32 * ct + i), V(vT0)) for i in range(32)]
    o += [I('s_nop', 1)]
    return o
def rare_code():
    o = []
    for name, par in rare_sites:
        o += [Label(f"L_rare_{name}"), I('s_call_b64', S(sRET, 2), f"L_rare_sub{par}"), I('s_branch', f"L_back_{name}")]
    for par in range(2):
        o += [Label(f"L_rare_sub{par}")] + rare_body(par) + [I('s_setpc_b64', S(sRET, 2))]
    return o

RP = lambda p: L_RING + p * TILE
WQ0 = [L_WQ, L_WQ + 2 * KWQ, L_WQ + 4 * KWQ, L_QB, L_QB + 2 * KWQ, RP(6), RP(7), RP(8), RP(9), L_WQ, L_WQ + 2 * KWQ, L_WQ + 4 * KWQ, L_QB, L_QB + 2 * KWQ, RP(6), RP(9), RP(1), RP(8)]
def wq0_loc(k): return WQ0[k]
XLOC = [RP(0), RP(3), RP(0), RP(3), L_XP]
XNEED = [0, 4, 8, 12, 14]
def xks(D): return range(4 * D, min(4 * D + 4, XREG)) if D < 4 else range(XREG, NKS)
PSCHED = {-1: ['x0', 'g0', 'g1', 'g2', 'g3', 'x1'], 0: ['g4', 'g5'], 1: ['g6', 'x2'], 2: ['g7'], 3: ['g8', 'g9'], 4: ['g10'], 5: ['x3', 'g11'], 6: ['g12', 'x4'], 7: ['g13'],
          8: ['g14'], 9: ['g15', 'g16'], 10: ['g17', 'm0'], 11: ['m1'], 12: ['q0', 'm2', 'm3'], 13: ['q1', 'm4'], 14: ['q2', 'm5', 'm6'], 15: ['q3', 'm7'], 16: ['q4', 'q5'], 17: []}
def check_psched():
    occ = []
    seen = []
    for j in sorted(PSCHED):
        for it in PSCHED[j]:
            k = int(it[1:])
            if it[0] == 'x': lo, n, rel, need = XLOC[k], 3 * TILE, (XNEED[k] + 1 if k < 4 else 99), XNEED[k]
            elif it[0] == 'g': lo, n, rel, need = wq0_loc(k), 2 * KWQ, k + 1, k
            elif it[0] == 'q': lo, n, rel, need = L_WQ + k * KWQ, KWQ, 99, 18
            elif SEQ_N[k][0] == 'W': continue
            else: lo, n, rel, need = RP(k), TILE, 99, 18
            assert need > j, (it, j)
            for a, b, r in occ: assert b <= lo or lo + n <= a or r <= j, (it, j, a, b, r)
            occ.append((lo, lo + n, rel)); seen.append(it)
    for kind, n in (('x', 5), ('g', 18), ('q', 6)): assert [x for x in seen if x[0] == kind] == [kind + str(i) for i in range(n)]
def pro_item(it, cfg, role):
    k = int(it[1:]); o = []
    if it[0] == 'x':
        col = 256 * k if k < 4 else 896
        for w in range(3):
            for i in range(2):
                o += [I('s_add_u32', 'm0', S(sWX), XLOC[k] + w * TILE + i * PIECE), I('s_add_u32', S(sT2), S(sXb), (32 * w + 4 * i) * 1152 + col),
                      I('buffer_load_dwordx4', V(pX2 if k == 3 else pX), S(SX, 4), S(sT2), mods=f"offen {cfg.xflags} lds", tag=('p%d' % XNEED[k], False))]
    elif it[0] == 'g':
        for hh in range(2):
            o += [I('s_add_u32', 'm0', S(sWP), wq0_loc(k) + hh * (KWQ - 128)),
                  I('buffer_load_dwordx4', V(pDQ), S(SWQ, 4), S(sPq), mods=f"offen {'offset:128 ' if hh else ''}{cfg.pflags} lds", tag=('p%d' % k, False))]
        o += [I('s_add_u32', S(sPq), S(sPq), 262144)]
    elif it[0] == 'm': o = dma_gran(k, False, cfg, role, True)
    elif it[0] == 'q': o = dma_wq(k, cfg) if role == 'Q' and k < cfg.la else []
    elif it[0] == 'b':
        o = [I('s_mov_b32', 'm0', L_QB + 17408), I('s_nop', 0)]
        for e in range(3):
            o += [I('buffer_load_dwordx4', V(pLin), S(SPF, 4), S(sPf0), mods=f"offen {'offset:%d ' % (1024 * e) if e else ''}{fl} lds") for fl in ('nt', 'sc1')]
        o += [I('s_add_u32', S(sPf0), S(sPf0), 3072)]
    return o
def pro_items(j, cfg, role):
    o = []
    for it in PSCHED[j] + ['b%d' % e for e in range(3) if cfg.bpos + e * cfg.bstep == j]: o += pro_item(it, cfg, role)
    return o
def pbarrier(j): return [Wait(lg=0, vm=lambda op, ctx: op['stream'] is not None and op['stream'][0] == 'p' and int(op['stream'][1:]) <= j), I('s_barrier', tag=('xbar', True))]

def a_prologue(cfg):
    pro = []
    w = sW
    tp = lambda: trace_pt(cfg) if cfg.trace == 1 else []
    pro += [I('s_lshl_b32', S(sT0), S(w), 13), I('s_add_u32', S(sT0), S(sT0), L_QB), I('v_add_u32', V(vQl), S(sT0), V(pLin)),
            I('s_mul_i32', S(sT0), S(sGam), 27), I('s_mul_i32', S(sT1), S(w), 9), I('s_add_u32', S(sT0), S(sT0), S(sT1)),
            I('s_lshl_b32', S(sT0), S(sT0), 3), I('s_add_u32', S(sT0), S(sT0), S(sG)), I('s_lshl_b32', S(sSt), S(sT0), 12)]
    if cfg.pf:
        pro += [I('s_getpc_b64', S(68, 2)), Label('L_pcref'), I('s_mov_b32', S(70), 'L_exit-L_pcref'), I('s_mov_b32', S(71), '0x20000'),
                I('s_lshr_b32', S(sT0), S(2), 3), I('s_mul_i32', S(sT0), S(sT0), 3), I('s_add_u32', S(sT0), S(sT0), S(w)), I('s_lshl_b32', S(sT0), S(sT0), 10),
                I('s_mov_b32', 'm0', L_QB + 17408), I('s_nop', 0), I('buffer_load_dwordx4', V(pLin), S(68, 4), S(sT0), mods="offen lds")]
    if cfg.trace == 1: pro += trace_init(cfg)
    for h in range(2):
        pro += [I('v_add_u32', V(vK[h]), L_RING + 5 * h * TILE, V(pKl)), I('v_add_u32', V(vV[h]), L_RING + 5 * h * TILE, V(pVl)), I('v_add_u32', V(vW[h]), L_RING + 5 * h * TILE, V(pWol))]
    SEG = 61440
    pro += [I('v_add_u32', V(pA), SEG, V(pWl)), I('v_add_u32', V(pB), 2 * SEG, V(pWl)),
            I('s_mul_i32', S(sT1), S(w), TILE), I('s_add_u32', S(sT0), S(sT1), L_RING), I('v_add_u32', V(pC), S(sT0), V(pKl)), I('s_add_u32', S(sT0), S(sT1), L_XP), I('v_add_u32', V(pD), S(sT0), V(pKl))]
    pro += [I('v_accvgpr_write_b32', A(i), 0) for i in range(144, 256)] + [I('v_mov_b32', V(224 + i), 0) for i in range(32)]
    bank = lambda j, n: (FB if j % 2 == 0 else SB[0]) + 4 * n
    def rd0(j, n):
        loc = wq0_loc(j); sg = loc // SEG
        return [I('ds_read_b64_tr_b16', V(bank(j, n) + 2 * v, 2), V((pWl, pA, pB)[sg]), mods=f"offset:{loc - sg * SEG + (n // 4) * KWQ + (n % 4) * 32 + v * 256}") for v in range(2)]
    def rdx(j):
        if j not in XNEED: return []
        D = XNEED.index(j)
        return [I('ds_read_b128', A(8 * k + 4 * ct, 4), V(pC if D < 4 else pD), mods=f"offset:{(XLOC[D] - L_RING if D < 4 else 0) + ct * 4 * PIECE + 64 * i}") for i, k in enumerate(xks(D)) for ct in range(2)]
    def mf0(j, n, ct):
        d = V(O + 32 * ct + 4 * n, 4)
        return I(MF, d, V(bank(j, n), 4), A(8 * j + 4 * ct, 4), d if j else '0')
    pro += pbarrier(0) + stamp(cfg, 2) + tp() + rdx(0) + [x for n in range(8) for x in rd0(0, n)] + fixup(pro_items(0, cfg, 'A'))
    for j in range(1, 19):
        gaps = [[] for _ in range(16)]
        qs = []
        if j < 18:
            pro += pbarrier(j) + tp()
            qs += [([x for n in range(8) for x in rd0(j, n)] + rdx(j), 0, 11), (dma_chunks(pro_items(j, cfg, 'A')), 0, 15)]
        else:
            if cfg.trace == 2: pro += trace_init(cfg)
            pro += barrier(0, 0) + stamp(cfg, 1) + trace_pt(cfg)
            qs += [([x for n in range(8) for x in rd_frag(0, 'K', n, n)], 0, 11), (dma_chunks(split_dma(dma_after(0, False, cfg, 'A', True), cfg.frac)[0]), 0, 15)]
        if j >= 2: qs.append(([I('v_accvgpr_write_b32', A(8 * (j - 2) + i), 0) for i in range(8)], 4, 15))
        schedule(gaps, qs); front(gaps)
        pro += fixup(interleave([mf0(j - 1, n // 2, n % 2) for n in range(16)], gaps))
    pro += [I('v_accvgpr_write_b32', A(8 * 17 + i), 0) for i in range(8)]
    for kq in range(4):
        pro += norm_part(kq, lambda ct: S(sC), QF) + [I('s_nop', 0)]
        for sw in ('v_permlane32_swap_b32', 'v_permlane16_swap_b32'):
            pro += [I(sw, V(QF + 8 * kq + 4 * ct + e), V(QF + 8 * kq + 4 * ct + e + 2)) for ct in range(2) for e in range(2)]
    pro += [I('s_nop', 1)]
    return pro

def tail_ptrs(cfg): return [I('s_load_dwordx2', S(SOUT, 2), S(0, 2), 80), I('s_load_dwordx2', S(SDBG, 2), S(0, 2), 88)]
def reduce_body(cfg):
    u = sT2; ln = 8; sDone = 68; sNew = 69; sFl = 70; sOwn = 71; sCnt = 72; sBase = 73; acc = 160
    o = [I('v_mov_b32', V(4), 0), I('ds_read_b32', V(5), V(4)),
         I('s_mov_b32', S(SOUT + 2), 16 * 96 * 1152 * 2), I('s_mov_b32', S(SOUT + 3), '0x20000')] + lane_id(ln) + [
         I('v_lshlrev_b32', V(9), 4, V(ln)), I('v_lshlrev_b32', V(3), 2, V(ln)),
         I('s_lshl_b32', S(sFl), S(sGam), 3), I('s_add_u32', S(sFl), S(sFl), S(sG)), I('s_lshl_b32', S(sFl), S(sFl), 8), I('s_add_u32', S(sFl), S(sFl), FLAG_OFF),
         I('s_lshl_b32', S(sOwn), 1, S(sG)), I('s_mov_b32', S(sDone), 0), I('s_mov_b32', S(sCnt), 0), I('s_mov_b32', S(67), '0xffff0000'),
         I('s_waitcnt', 'lgkmcnt(0)'), I('v_readfirstlane_b32', S(u), V(5)), I('s_and_b32', S(u), S(u), 31), I('s_add_u32', S(u), S(u), S(sW)),
         I('s_cmp_ge_u32', S(u), 27), I('s_cbranch_scc1', 'L_done'),
         I('s_mul_i32', S(sBase), S(sGam), 27), I('s_add_u32', S(sBase), S(sBase), S(u)), I('s_lshl_b32', S(sBase), S(sBase), 15),
         Label('L_poll'), I('s_mov_b64', 'exec', 255),
         I('buffer_load_dword', V(6), V(3), S(SWS, 4), S(sFl), mods="offen sc1")]
    o += [NoTrace([])]
    o += [I('s_waitcnt', 'vmcnt(0)'), I('v_cmp_eq_u32', 'vcc', 1, V(6)), I('s_mov_b64', 'exec', -1), I('s_add_u32', S(sCnt), S(sCnt), 1), I('s_nop', 1),
          I('s_and_b32', S(sNew), 'vcc_lo', 255), I('s_or_b32', S(sNew), S(sNew), S(sOwn)), I('s_andn2_b32', S(sNew), S(sNew), S(sDone)),
          I('s_cmp_lg_u32', S(sNew), 0), I('s_cbranch_scc1', 'L_have'),
          NoTrace([I('s_sleep', cfg.psleep), I('s_cmp_lt_u32', S(sCnt), 0x100000), I('s_cbranch_scc1', 'L_poll'), I('s_branch', 'L_done')]),
          Label('L_have'), I('s_mov_b32', S(sT0), S(sBase))]
    for g in range(8):
        o += [I('s_bitcmp1_b32', S(sNew), g), I('s_cbranch_scc0', f'L_nl{g}')]
        o += [I('buffer_load_dwordx4', V(32 + 16 * g + 4 * q, 4), V(9), S(SWS, 4), S(sT0), mods=f"offen {'offset:%d ' % (1024 * q) if q else ''}{cfg.rdflags}") for q in range(4)]
        o += [Label(f'L_nl{g}'), I('s_add_u32', S(sT0), S(sT0), 4096)]
    o += [I('s_cmp_lg_u32', S(sDone), 0), I('s_cbranch_scc1', 'L_notfirst')]
    o += [I('v_mov_b32', V(acc + i), 0) for i in range(32)]
    o += [I('s_mul_hi_u32', S(64), S(u), 477218589), I('s_mul_i32', S(65), S(64), 9), I('s_sub_u32', S(65), S(u), S(65)),
          I('s_mul_i32', S(66), S(sB), 96), I('s_lshl_b32', S(64), S(64), 5), I('s_add_u32', S(66), S(66), S(64)), I('s_mul_i32', S(66), S(66), 2304),
          I('s_mul_i32', S(64), S(sBlk), 1152), I('s_add_u32', S(66), S(66), S(64)), I('s_lshl_b32', S(65), S(65), 7), I('s_add_u32', S(66), S(66), S(65)),
          I('v_and_b32', V(4), 15, V(ln)), I('v_mul_u32_u24', V(4), 2304, V(4)), I('v_lshrrev_b32', V(5), 5, V(ln)), I('v_lshl_add_u32', V(4), V(5), 4, V(4)),
          I('v_bfe_u32', V(5), V(ln), 4, 1), I('v_lshl_add_u32', V(4), V(5), 5, V(4)), I('v_add_u32', V(5), 16 * 2304, V(4)),
          Label('L_notfirst'), I('s_or_b32', S(sDone), S(sDone), S(sNew)), I('s_waitcnt', 'vmcnt(0)')]
    for g in range(8):
        o += [I('s_bitcmp1_b32', S(sNew), g), I('s_cbranch_scc0', f'L_na{g}')]
        for d in range(16):
            src = V(32 + 16 * g + d)
            o += [I('v_lshlrev_b32', V(6), 16, src), I('v_and_b32', V(7), S(67), src),
                  I('v_add_f32', V(acc + 2 * d), V(acc + 2 * d), V(6)), I('v_add_f32', V(acc + 2 * d + 1), V(acc + 2 * d + 1), V(7))]
        o += [Label(f'L_na{g}')]
    o += [I('s_cmp_lg_u32', S(sDone), 255), I('s_cbranch_scc1', 'L_poll')]
    for q in range(4):
        pk = 192 + 4 * q
        o += [I('v_cvt_pk_bf16_f32', V(pk + i), V(acc + 8 * q + 2 * i), V(acc + 8 * q + 2 * i + 1)) for i in range(4)]
        o += [I('s_nop', 1), I('v_permlane16_swap_b32', V(pk), V(pk + 2)), I('v_permlane16_swap_b32', V(pk + 1), V(pk + 3)),
              I('buffer_store_dwordx4', V(pk, 4), V(4 + q // 2), S(SOUT, 4), S(66), mods=f"offen {'offset:64 ' if q % 2 else ''}{cfg.oflags}")]
    return o

def build_a(cfg):
    pro = a_prologue(cfg)
    com = []; nrm = []; lst = []
    steps = {}
    for s in range(13): steps[s] = a_step(s, cfg, False); com += steps[s]
    for s in range(13, 18): steps[s] = a_step(s, cfg, False); nrm += steps[s]
    for s in range(13, 24):
        lst += a_step(s, cfg, True)
        if s == 17: lst += stamp(cfg, 3)
    cfg.a_round = com + nrm
    chk = [I('s_cmp_eq_u32', S(sR), 3), I('s_cbranch_scc1', 'L_alast')]
    nxt = [I('s_add_u32', S(sR), S(sR), 1)]
    rs = []
    if cfg.stamps:
        for rr, n in ((1, 5), (3, 6)):
            rs += [I('s_cmp_eq_u32', S(sR), rr), I('s_cbranch_scc0', f'L_nost{n}')] + stamp(cfg, n) + [Label(f'L_nost{n}')]
    cfg.red = reduce_body(cfg)
    if cfg.r0:
        for s in range(18): pro += a_step(s, cfg, False, True)
        pro += nxt + stamp(cfg, 5)
    prog = pro + [Label("L_around"), Loop(2 if cfg.r0 else 3, com + chk + nrm + nxt + [NoTrace(rs + [I('s_branch', 'L_around')])]), Seq(com + chk), Label("L_alast")] + tail_ptrs(cfg) + lst + stamp(cfg, 4)
    prog += [I('s_waitcnt', 'vmcnt(0)'), I('s_barrier'), Label('L_reduce')] + cfg.red + [Label('L_done')]
    prog += flush(cfg) + [I('s_endpgm'), NoTrace(rare_code())]
    return prog

def wf(k, dt): return WF + 16 * (k & 1) + 4 * dt
def rd_wq(k):
    o = []
    for dt in range(4):
        for v in range(2):
            o.append(I('ds_read_b64_tr_b16', V(wf(k, dt) + 2 * v, 2), V(vWl), mods=f"offset:{(k % WQRING) * KWQ + v * 256 + dt * 32}", tag=('wqr', dt == 0 and v == 0)))
    return o
def rd_xp(k, rt):
    if k < XREG: return []
    return [I('ds_read_b128', XF(k, rt), V(vX0), mods=f"offset:{(rt // 2) * TILE + (rt % 2) * 4 * PIECE + 64 * (k - XREG)}")]
def next_half_salu():
    return [I('s_add_u32', S(sEta), S(sEta), 1), I('s_lshr_b32', S(sT0), S(sEta), 1), I('s_add_u32', S(sT0), S(sT0), S(sHr)), I('s_and_b32', S(sT0), S(sT0), 3),
            I('s_lshl_b32', S(sT1), S(sG), 2), I('s_add_u32', S(sT0), S(sT0), S(sT1)), I('s_lshl_b32', S(sT0), S(sT0), 8),
            I('s_xor_b32', S(sT1), S(sEta), S(sRot)), I('s_and_b32', S(sT1), S(sT1), 1), I('s_lshl_b32', S(sT1), S(sT1), 7), I('s_add_u32', S(sWqo), S(sT0), S(sT1)),
            I('s_cmp_ge_u32', S(sEta), 8), I('s_cselect_b32', S(SWQ + 2), 0, S(SWQ + 2))]
def dma_wq(k, cfg):
    o = []
    if k % NKS == 0: o += next_half_salu()
    for i in range(4):
        o += [I('s_mov_b32', 'm0', L_WQ + (k % WQRING) * KWQ + i * PT),
              I('buffer_load_dwordx4', V(vDQ[i]), S(SWQ, 4), S(sWqo), mods=f"offen {cfg.wflags} lds", tag=('wq', i == 0))]
    o += [I('s_add_u32', S(sWqo), S(sWqo), 262144)]
    return o
def wq_wait(n): return Wait(vm=lambda op, ctx: op['stream'] == 'wq' and op['grp'] <= grp(ctx, 'wqr') + n)
def epi_tile(rt):
    a = ACC + 16 * rt; o = []
    for h in range(2):
        pk = PK + 4 * h
        o += [I('v_mul_f32', V(a + 8 * h + i), S(sC), V(a + 8 * h + i)) for i in range(8)]
        o += [I('v_cvt_pk_bf16_f32', V(pk + k), V(a + 8 * h + 2 * k), V(a + 8 * h + 2 * k + 1)) for k in range(4)]
        o += [I('ds_write_b64', V(vQW), V(pk + 2 * be, 2), mods=f"offset:{(rt // 2) * 8192 + (2 * h + rt % 2) * 1024 + be * 512}") for be in range(2)]
    return o
def chunks(x, n): return [x[i:i + n] for i in range(0, len(x), n)]

def q_round(cfg):
    slots = []
    epi_hd = lambda: [I('v_add_u32', V(vQW), S(sHalf), V(vQWl)), I('s_xor_b32', S(sHalf), S(sHalf), 4096)]
    for kk in range(2 * NKS):
        k = kk % NKS; k1 = (k + 1) % NKS
        gaps = [[] for _ in range(24)]
        gaps[0].append(wq_wait(1))
        for i, x in enumerate(rd_wq(k1)): gaps[1 + 2 * i].append(x)
        for rt in range(6): gaps[4 * rt + 3] += rd_xp(k1, rt)
        wl = dma_wq(k + cfg.la, cfg)
        cuts = [0] + [i + 1 for i, x in enumerate(wl) if x.kind == 'dma'][:3] + [len(wl)]
        for i in range(24):
            rt, dt = i // 4, i % 4
            acc = V(ACC + 4 * i, 4)
            m = I(MF, acc, V(wf(k, dt), 4), XF(k, rt), acc if k else '0')
            pre = []
            if i == 0: pre = [Wait(lg=[V(wf(k, 0), 16)] + ([XF(k, x) for x in range(4)] if k >= XREG else []))]
            if i == 16 and k >= XREG: pre = [Wait(lg=[XF(k, 4), XF(k, 5)])]
            if kk == NKS and dt == 0:
                e = (epi_hd() if i == 0 else []) + epi_tile(rt)
                for c in chunks(e, 4): slots.append([[], None, c, []])
            slots.append([pre, m, gaps[i], wl[cuts[i // 6]:cuts[i // 6 + 1]] if i % 6 == 2 else []])
    e = epi_hd()
    for rt in range(6): e += epi_tile(rt)
    for c in chunks(e, 4): slots.append([[], None, c, []])
    tr = []; flatten(cfg.a_round, tr)
    bpos = [i for i, x in enumerate(tr) if x.kind == 'barrier']
    tot = cost(tr); t0 = tot - cost(tr[:bpos[-1] + 1])
    tgt = [(cost(tr[:p + 1]) + t0) / tot for p in bpos[:-1]]
    sc = [max(16 if sl[1] else 0, (8 if sl[1] else 0) + 4 * sum(weight(x) for x in sl[0] + sl[2])) for sl in slots]
    cum = []; c = 0
    for x in sc: cum.append(c); c += x
    bslot = [0] + [min(range(len(slots)), key=lambda i: abs(cum[i] / c - t)) for t in tgt] + [len(slots)]
    out = []
    for s in range(18):
        seg = slots[bslot[s]:bslot[s + 1]]
        d = dma_after(s, False, cfg, 'Q')
        gl = [list(sl[2]) for sl in seg]
        mfs = [i for i, sl in enumerate(seg) if sl[1] is not None and not sl[3]] or list(range(len(seg)))
        ch = []; cur = []
        for it in d:
            cur.append(it)
            if it.kind == 'dma': ch.append(cur); cur = []
        if cur:
            if ch: ch[-1] += cur
            else: ch.append(cur)
        q0 = int(len(mfs) * cfg.qstart); span = max(1, int(len(mfs) * cfg.qspan) - q0)
        for i, cc in enumerate(ch): gl[mfs[q0 + (i * span) // len(ch)]] += cc
        seq = barrier(s, 0 if s == 0 else None)
        for sl, g in zip(seg, gl):
            seq += sl[0] + ([sl[1]] if sl[1] is not None else []) + g + sl[3]
        out += fixup(seq)
    return out

def build_q(cfg):
    pro = [I('v_mov_b32', V(vWl), V(pWl)),
           I('v_and_b32', V(pT1), 15, V(pLane)), I('v_lshlrev_b32', V(vQWl), 4, V(pT1)), I('v_lshrrev_b32', V(pT1), 5, V(pLane)), I('v_lshl_add_u32', V(vQWl), V(pT1), 8, V(vQWl)),
           I('v_bfe_u32', V(pT1), V(pLane), 4, 1), I('v_lshl_add_u32', V(vQWl), V(pT1), 3, V(vQWl)), I('v_add_u32', V(vQWl), L_QB, V(vQWl)),
           I('v_subrev_u32', V(vDQ[0]), 3 * 8192, V(pDQ))]
    pro += [I('v_add_u32', V(vDQ[i]), 8192 * i, V(vDQ[0])) for i in range(1, 4)]
    pro += [I('s_lshr_b32', S(sRot), S(sB), 2), I('s_and_b32', S(sRot), S(sRot), cfg.hrot), I('s_lshl_b32', S(sHalf), S(sRot), 12), I('s_mov_b32', S(sEta), 1),
            I('v_add_u32', V(pC), L_RING, V(pKl)), I('v_add_u32', V(vX0), L_XP, V(pKl))]
    assert NGE[0] == 9 and cfg.r0
    pro += tail_ptrs(cfg) + [I('s_lshl_b32', S(sSt), S(sGam), 3), I('s_add_u32', S(sSt), S(sSt), S(sG)), I('s_lshl_b32', S(sSt), S(sSt), 8), I('s_add_u32', S(sSt), S(sSt), FLAG_OFF),
            I('v_lshlrev_b32', V(pT1), 2, V(pLane)), I('v_mov_b32', V(pT2), 0), I('v_mov_b32', V(pA), 1),
            I('buffer_store_dword', V(pT2), V(pT1), S(SWS, 4), S(sSt), mods="offen sc1", tag=('p3', False))]
    for j in range(18):
        pro += pbarrier(j) + (stamp(cfg, 2) if j == 0 else [])
        rd = []
        if j in XNEED[:4]:
            D = XNEED.index(j)
            rd = [I('ds_read_b128', XF(k, rt), V(pC), mods=f"offset:{XLOC[D] - L_RING + (rt // 2) * TILE + (rt % 2) * 4 * PIECE + 64 * i}") for i, k in enumerate(xks(D)) for rt in range(6)]
        pro += rd + fixup(pro_items(j, cfg, 'Q'))
        if j == 3:
            pro += [I('s_mov_b32', S(SDBG + 2), 256), I('s_mov_b32', S(SDBG + 3), '0x20000'), I('s_lshl_b32', S(sT0), S(sGam), 3),
                    I('s_mov_b64', 'exec', 1), I('buffer_atomic_add', V(pA), V(pT2), S(SDBG, 4), S(sT0), mods="offen offset:4"), I('s_mov_b64', 'exec', -1)]
    pro += [wq_wait(1)] + rd_wq(0) + stamp(cfg, 1)
    rnd = [Label("L_qround")] + q_round(cfg) + [I('s_add_u32', S(sR), S(sR), 1), I('s_cmp_lt_u32', S(sR), 3), I('s_cbranch_scc1', 'L_qround')]
    last = []
    for s in range(24):
        last += barrier(s, 0 if s == 0 else None) + fixup(dma_after(s, True, cfg, 'Q'))
        if s == 1:
            last += [I('s_lshl_b32', S(sPf), S(sGam), 3), I('v_mov_b32', V(16), 0), I('v_mov_b32', V(17), 4), I('v_mov_b32', V(20), 1)] + lane_id(19) + [
                     I('v_lshlrev_b32', V(19), 8, V(19)), I('s_lshl_b32', S(sT0), S(sG), 2), I('v_add_u32', V(19), S(sT0), V(19)),
                     I('buffer_load_dword', V(18), V(16), S(SDBG, 4), S(sPf), mods="offen offset:4 sc1", tag=('rdy', True))]
        if s == 6:
            last += [Wait(vm=lambda op, ctx: op['stream'] == 'rdy'), I('s_mov_b32', S(sMask), 0), Label('L_rdy'), I('v_readfirstlane_b32', S(sT0), V(18)), I('s_add_u32', S(sMask), S(sMask), 1),
                     I('s_and_b32', S(sT0), S(sT0), 7), I('s_cmp_eq_u32', S(sT0), 0), I('s_cbranch_scc1', 'L_rdyok'),
                     NoTrace([I('buffer_load_dword', V(18), V(16), S(SDBG, 4), S(sPf), mods="offen offset:4 sc1"), I('s_waitcnt', 'vmcnt(0)'), I('s_cmp_lt_u32', S(sMask), 0x100000), I('s_cbranch_scc1', 'L_rdy')]),
                     Label('L_rdyok')]
        if s == cfg.tks:
            last += [I('s_mov_b64', 'exec', 1), I('buffer_atomic_add', V(17), V(16), S(SDBG, 4), S(sPf), mods="offen sc0", tag=('tk', True)), I('s_mov_b64', 'exec', -1)]
        if s == cfg.fpf:
            last += lane_id(vDWs) + [I('v_lshlrev_b32', V(vDWs), 4, V(vDWs))] + head_of(0, sT0) + [I('s_mul_i32', S(sT0), S(sT0), 147456), I('s_mul_i32', S(sT1), S(sB), 9216),
                     I('s_add_u32', S(sT0), S(sT0), S(sT1)), I('s_mov_b32', 'm0', L_WQ), I('s_nop', 0)]
            for i in range(9):
                last += [I('buffer_load_dwordx4', V(vDWs), S(SWO, 4), S(sT0), mods="offen lds"), I('s_add_u32', S(sT0), S(sT0), 1024)]
    prog = pro + [Loop(3, rnd)] + stamp(cfg, 3) + last
    prog += [I('s_and_b32', S(sT0), S(sSt), hex(0xfffff800)), I('s_waitcnt', 'vmcnt(0)'), I('s_mov_b64', 'exec', 1), I('ds_write_b32', V(16), V(17)), I('s_waitcnt', 'lgkmcnt(0)'),
             I('s_barrier'), I('s_mov_b64', 'exec', 255), I('buffer_store_dword', V(20), V(19), S(SWS, 4), S(sT0), mods="offen sc1"), I('s_mov_b64', 'exec', -1)] + stamp(cfg, 4)
    prog += [NoTrace([I('s_branch', 'L_reduce')]), Seq(cfg.red)]
    return prog

def common_prologue(cfg):
    a = cfg.a
    o = [I('s_cmp_ge_u32', S(2), 256), I('s_cbranch_scc1', 'L_exit'),
         I('s_load_dwordx16', S(56, 16), S(0, 2), 0), I('s_load_dwordx4', S(72, 4), S(0, 2), 64), I('s_load_dwordx2', S(SWS, 2), S(0, 2), 96)]
    o += stamp(cfg, 0)
    o += [I('v_lshrrev_b32', V(vT0), 6, V(0)), I('v_and_b32', V(pLane), 63, V(0)), I('v_readfirstlane_b32', S(sW), V(vT0)),
          I('s_and_b32', S(sT0), S(2), 7)] + ([I('s_xor_b32', S(sT0), S(sT0), 4)] if cfg.map == 1 else []) + ([I('s_lshr_b32', S(sBlk), S(sT0), 2), I('s_and_b32', S(sG), S(sT0), 3)] if cfg.map < 2 else [I('s_and_b32', S(sBlk), S(sT0), 1), I('s_lshr_b32', S(sG), S(sT0), 1)]) + [
          I('s_lshr_b32', S(sT1), S(2), 3), I('s_lshr_b32', S(sB), S(sT1), 1),
          I('v_lshrrev_b32', V(vT0), 4, V(pLane)), I('v_and_b32', V(pT1), 15, V(pLane)),
          I('v_xor_b32', V(pT2), V(pT1), V(vT0)), I('v_lshlrev_b32', V(pT2), 4, V(pT2)),
          I('v_mul_u32_u24', V(pX), 1152, V(vT0)), I('v_add_u32', V(pX), V(pX), V(pT2)),
          I('s_mul_i32', S(sT0), S(sW), 8 * 1152), I('v_add_u32', V(pX), S(sT0), V(pX)),
          I('s_mul_i32', S(sWX), S(sW), 2 * PIECE), I('s_mul_i32', S(sXb), S(sB), 110592), I('s_mul_i32', S(sWP), S(sW), PT),
          I('s_and_b32', S(sT1), S(sT1), 1), I('s_lshl_b32', S(sG), S(sG), 1), I('s_add_u32', S(sG), S(sG), S(sT1)),
          I('s_and_b32', S(sHr), S(sB), cfg.rot), I('s_mov_b32', S(sR), 0)] + head_of(0, sT0) + [I('s_lshl_b32', S(sPq), S(sT0), 8),
          I('v_and_b32', V(pA), 7, V(pLane)), I('v_lshlrev_b32', V(pDQ), 4, V(pA)),
          I('v_lshrrev_b32', V(pA), 5, V(pLane)), I('v_lshl_add_u32', V(pDQ), V(pA), 17, V(pDQ)),
          I('v_bfe_u32', V(pA), V(pLane), 3, 1), I('v_lshl_add_u32', V(pDQ), V(pA), 16, V(pDQ)), I('v_lshl_add_u32', V(pX2), V(pA), 31, V(pX)),
          I('v_bfe_u32', V(pA), V(pLane), 4, 1), I('v_lshl_add_u32', V(pDQ), V(pA), 15, V(pDQ)),
          I('s_lshl_b32', S(sT0), S(sW), 13), I('v_add_u32', V(pDQ), S(sT0), V(pDQ)),
          I('s_mov_b32', S(SX + 2), 1769472), I('s_mov_b32', S(SX + 3), '0x20000'), I('s_mov_b32', S(SWQ + 2), WSIZE), I('s_mov_b32', S(SWQ + 3), '0x20000'),
          I('s_waitcnt', 'lgkmcnt(0)'), I('s_cmp_eq_u32', S(sBlk), 0),
          I('s_cselect_b32', S(SX), S(56), S(66)), I('s_cselect_b32', S(SX + 1), S(57), S(67)), I('s_cselect_b32', S(SWQ), S(62), S(72)), I('s_cselect_b32', S(SWQ + 1), S(63), S(73)),
          I('s_cselect_b32', S(SK), S(58), S(68)), I('s_cselect_b32', S(SK + 1), S(59), S(69)), I('s_cselect_b32', S(SV), S(60), S(70)), I('s_cselect_b32', S(SV + 1), S(61), S(71)),
          I('s_cselect_b32', S(SWO), S(64), S(74)), I('s_cselect_b32', S(SWO + 1), S(65), S(75))]
    o += fixup(pro_items(-1, cfg, None))
    o += [I('s_lshl_b32', S(sGam), S(sBlk), 4), I('s_add_u32', S(sGam), S(sGam), S(sB)),
          I('s_mov_b32', S(sT), hex(f2u(cfg.thr))), I('s_mov_b32', S(sC), hex(f2u(1.4426950408889634 / 128 ** 0.5))),
          I('s_mul_i32', S(sWK), S(sW), a * PIECE), I('s_mul_i32', S(sWT), S(sW), a * PT), I('v_lshlrev_b32', V(pLin), 4, V(pLane)),
          I('v_lshlrev_b32', V(vDV), 11, V(vT0)), I('v_lshl_add_u32', V(vDV), V(pT1), 4, V(vDV)),
          I('v_lshl_add_u32', V(vDK), V(vT0), 8, V(pT2)),
          I('s_mul_i32', S(sT0), S(sW), a * 1024), I('v_add_u32', V(vDK), S(sT0), V(vDK)),
          I('s_mul_i32', S(sT0), S(sW), a * 256), I('v_add_u32', V(vDV), S(sT0), V(vDV)),
          I('v_lshrrev_b32', V(vT0), 3, V(pLane)), I('v_mul_u32_u24', V(vDW), 9216, V(vT0)), I('v_and_b32', V(vT0), 7, V(pLane)),
          I('v_lshl_add_u32', V(vDW), V(vT0), 4, V(vDW)), I('s_mul_i32', S(sT0), S(sW), a * 1152), I('v_add_u32', V(vDW), S(sT0), V(vDW)),
          I('v_bfe_u32', V(vT0), V(pLane), 2, 2), I('v_mul_u32_u24', V(pKl), PIECE, V(vT0)),
          I('v_and_b32', V(vT0), 3, V(pLane)), I('v_lshl_add_u32', V(pKl), V(vT0), 8, V(pKl)),
          I('v_lshrrev_b32', V(pT1), 4, V(pLane)), I('v_xor_b32', V(pT1), V(pT1), V(vT0)), I('v_lshl_add_u32', V(pKl), V(pT1), 4, V(pKl)),
          I('v_bfe_u32', V(pT1), V(pLane), 2, 3), I('v_mul_u32_u24', V(pVl), PT, V(pT1)), I('v_lshl_add_u32', V(pVl), V(vT0), 3, V(pVl)),
          I('v_lshrrev_b32', V(pT1), 5, V(pLane)), I('v_lshl_add_u32', V(pWol), V(pT1), 7, V(pVl)), I('v_lshl_add_u32', V(pVl), V(pT1), 8, V(pVl)),
          I('v_lshlrev_b32', V(pWl), 3, V(vT0)), I('v_lshl_add_u32', V(pWl), V(pT1), 9, V(pWl)),
          I('v_bfe_u32', V(pT1), V(pLane), 4, 1), I('v_lshl_add_u32', V(pWl), V(pT1), 7, V(pWl)),
          I('v_bfe_u32', V(pT1), V(pLane), 2, 2), I('v_mul_u32_u24', V(pT1), PT, V(pT1)), I('v_add_u32', V(pWl), V(pWl), V(pT1)),
          I('s_mov_b32', S(SK + 2), 67108864), I('s_mov_b32', S(SK + 3), '0x20000'), I('s_mov_b32', S(SV + 2), 67108864), I('s_mov_b32', S(SV + 3), '0x20000'),
          I('s_mov_b32', S(SWO + 2), 0), I('s_mov_b32', S(SWO + 3), '0x20000'), I('s_mov_b32', S(SWS + 2), WS_BYTES), I('s_mov_b32', S(SWS + 3), '0x20000'),
          I('s_mov_b32', S(SPF), S(SWO)), I('s_mov_b32', S(SPF + 1), S(SWO + 1)), I('s_mov_b32', S(SPF + 2), WSIZE), I('s_mov_b32', S(SPF + 3), '0x20000'),
          I('s_lshr_b32', S(sT0), S(sG), 1), I('s_mul_i32', S(sT0), S(sT0), 1179648), I('s_lshr_b32', S(sT1), S(2), 3), I('s_lshl_b32', S(sT1), S(sT1), 2), I('s_add_u32', S(sT1), S(sT1), S(sW)),
          I('s_mul_i32', S(sT1), S(sT1), 9216), I('s_add_u32', S(sPf0), S(sT0), S(sT1)), I('s_mov_b32', S(sWoo), 73728)] + setup_kv(0)
    return o

def hook(it, ctx, vq, lq):
    t = getattr(it, 'tag', None)
    if t is None: return None
    if t[0] == 'mbar':
        if any(o['stream'] == 'main' and o['grp'] <= grp(ctx, 'need') for o in vq): return "main loads outstanding at barrier"
        if grp(ctx, 'main') < grp(ctx, 'need') and grp(ctx, 'main') < 217: return "needed granule not issued"
    if t[0] == 'xbar':
        if any(o['stream'] is not None and o['stream'][0] == 'p' and int(o['stream'][1:]) <= grp(ctx, 'xbar') for o in vq): return "start-up loads outstanding at barrier"
        if lq: return "LDS reads outstanding at start-up barrier"
    if t[0] == 'wqr':
        if any(o['stream'] == 'wq' and o['grp'] <= grp(ctx, 'wqr') for o in vq): return "wq load outstanding at read"
    if t[0] == 'wq':
        g = grp(ctx, 'wq') - WQRING
        if grp(ctx, 'wqr') < g or any(o['stream'] == 'wqr' and o['grp'] <= g for o in lq): return "wq ring overwrite before read done"
    if t[0] == 'main' and t[1]:
        if grp(ctx, 'main') - NG > grp(ctx, 'free') - 1: return "main ring overwrite too early"
    return None

def strip_lines(t, cfg):
    o = []; inq = False
    for l in t:
        w = l.split()
        op = w[0] if w else ''
        if op == 'L_qround:': inq = True
        if 'qmfma0' in cfg.strip and inq and op.startswith(('v_mfma', 'ds_read', 'v_mul', 'v_cvt')): continue
        if 'dma' in cfg.strip and op.startswith('buffer_load') and 'lds' in w: l = "    s_nop 0\n    s_nop 0"
        if 'mfma' in cfg.strip and op.startswith('v_mfma'): l = "    s_nop 0\n    s_nop 0"
        if 'exp' in cfg.strip and op.startswith('v_exp'): l = "    s_nop 0"
        if 'ds' in cfg.strip and op.startswith('ds_read'): l = "    s_nop 0\n    s_nop 0"
        if 'bar' in cfg.strip and op.startswith('s_barrier'): l = "    s_nop 0"
        if 'rare' in cfg.strip and op.startswith('s_cbranch_vccnz'): l = "    s_nop 0"
        if l.strip() == '; mark': continue
        o.append(l)
    return o

def generate(path, cfg):
    global rare_sites
    rare_sites = []
    check_psched()
    com = common_prologue(cfg)
    pa = build_a(cfg); pq = build_q(cfg)
    errs = []
    for nm, prog in (("A", com + pa), ("Q", com + pq)):
        tr = []; flatten(prog, tr); resolve_waits(tr)
        errs += check_trace(tr, nm, hook)
        print(nm, "trace len", len(tr), "est cycles", cost(tr), "barriers", sum(1 for x in tr if x.kind == 'barrier'), file=sys.stderr)
    tr = []; flatten(cfg.a_round, tr); print("A round est", cost(tr), file=sys.stderr)
    for par in range(2):
        errs += check_trace([I(MF, V(O, 4), V(32, 4), V(SB[1 - par], 4), V(O, 4))] + rare_body(par) + [I(MF, V(SB[1 - par], 4), V(32, 4), V(QF, 4), V(NEGM, 4))], "rare")
    if errs:
        for e in errs[:40]: print("ERR", e, file=sys.stderr)
        raise SystemExit(f"{len(errs)} errors")
    a = Asm()
    file_begin(a, [(KNAME, 256, 256, L_END)])
    kernel_begin(a, KNAME)
    t = []
    emit_text(com, t)
    emit_text([I('s_cmp_eq_u32', S(sW), 3), I('s_cbranch_scc1', 'L_qwave')], t)
    emit_text(pa, t)
    t.append("L_qwave:")
    emit_text(pq, t)
    t.append("L_exit:\n    s_endpgm")
    a("\n".join(strip_lines(t, cfg)))
    kernel_desc(a, KNAME, 512, 256)
    open(path, "w").write(a.text())
    import subprocess
    r = subprocess.run(["clang", "-x", "assembler", "-target", "amdgcn-amd-amdhsa", "-mcpu=gfx950", "-c", path, "-o", "chk.o"], capture_output=True, text=True)
    if r.returncode: raise SystemExit(r.stderr[:2000])
    r = subprocess.run(["llvm-objdump", "-h", "chk.o"], capture_output=True, text=True)
    print([l for l in r.stdout.splitlines() if '.text' in l][0].split()[2], file=sys.stderr)

if __name__ == "__main__":
    ap = argparse.ArgumentParser()
    ap.add_argument("out")
    ap.add_argument("--stamps", action="store_true"); ap.add_argument("--cyc", action="store_true"); ap.add_argument("--trace", type=int, default=0)
    ap.add_argument("--kvflags", default="nt"); ap.add_argument("--wflags", default=""); ap.add_argument("--pflags", default=""); ap.add_argument("--woflags", default=""); ap.add_argument("--fflags", default="")
    ap.add_argument("--stflags", default="sc1"); ap.add_argument("--rdflags", default="sc1")
    ap.add_argument("--thr", type=float, default=10.0); ap.add_argument("--strip", default="")
    ap.add_argument("--pf", type=int, default=1); ap.add_argument("--ra", type=int, default=5); ap.add_argument("--a", type=int, default=2)
    ap.add_argument("--dbgst", action="store_true"); ap.add_argument("--rot", type=int, default=3); ap.add_argument("--hrot", type=int, default=1); ap.add_argument("--map", type=int, default=0); ap.add_argument("--r0", type=int, default=1); ap.add_argument("--jit", type=int, default=0); ap.add_argument("--jits", type=int, default=2); ap.add_argument("--apf", type=int, default=0); ap.add_argument("--apf1", default="nt"); ap.add_argument("--apfd", type=int, default=2); ap.add_argument("--bpf", type=int, default=-1); ap.add_argument("--fpf", type=int, default=-1); ap.add_argument("--oflags", default=""); ap.add_argument("--k0", type=int, default=26); ap.add_argument("--hspan", type=float, default=0.8); ap.add_argument("--tks", type=int, default=22); ap.add_argument("--bmode", type=int, default=0); ap.add_argument("--bpos", type=int, default=17); ap.add_argument("--bstep", type=int, default=0); ap.add_argument("--xflags", default=""); ap.add_argument("--hstart", type=float, default=0.0); ap.add_argument("--qstart", type=float, default=0.0); ap.add_argument("--jit0", type=int, default=13); ap.add_argument("--wpf", type=int, default=0); ap.add_argument("--nge", type=int, default=9); ap.add_argument("--psleep", type=int, default=2); ap.add_argument("--la", type=int, default=6); ap.add_argument("--frac", type=float, default=0.5); ap.add_argument("--qspan", type=float, default=0.8)
    x = ap.parse_args()
    cfg = Cfg()
    for k, v in vars(x).items(): setattr(cfg, k, v)
    cfg.clk = 's_memtime' if x.cyc else 's_memrealtime'; cfg.strip = x.strip.split(',')
    NGE[0] = x.nge
    generate(x.out, cfg)
```

```python
import sys, argparse, struct
from asmlib import *
from fw import *

I = Ins
NG = 10; PIECE = 1088; PT = 1056; TILE = 8704
L_WQ = 0; L_RING = 26112; L_QB = L_RING + NG * TILE; L_XP = L_QB + 24576; L_END = L_XP + 26112
assert L_END == 163840
KWQ = 4 * PT; WQRING = 6; NKS = 18; XREG = 14
PART_BYTES = 256 * 27 * 4096
FLAG_OFF = PART_BYTES; WS_BYTES = PART_BYTES + 256 * 256
WSIZE = 4718592
STAMP_OFF = 64 * 1024 * 1024
MF = 'v_mfma_f32_16x16x32_bf16'
sW = 3; SK = 4; SV = 8; SWO = 12; SWQ = 16; SWS = 20; SX = 24
sR = 28; sLC = 29; sRET = 30
sKo = 32; sVo = 33; sWoo = 34; sWqo = 35; sPf = 38; sMask = 65; sPf0 = 66; sWK = 40; sWT = 39; sHr = 41; sWX = 42
sB = 43; sG = 44; sBlk = 45; sT = 46; sC = 47; sT0 = 48; sT1 = 49; sT2 = 50; sEta = 51; sRot = 52; sHalf = 53; sSt = 54; sGam = 55
SOUT = 56; SDBG = 60; sPq = 29; sXb = 36; sWP = 37; SPF = 76
sST = 80
vDK = 7; vDV = 8; vDW = 9; vT0 = 10
vK = (1, 4); vV = (2, 5); vW = (3, 6)
vL = (11, 12); vMx = 13; vQl = 0; vTr0 = 14; vTr1 = 15
FB = 16; NEGM = 48; vM = (56, 57); vT1 = 58; SB = (64, 80); QF = 96; OB = 128; O = 160
def OUT(nt, ct):
    t = 2 * nt + ct
    return A(4 * t, 4) if t < 64 else V(224 + 4 * (t - 64), 4)
pLane = 100; pKl = 101; pVl = 102; pWol = 103; pWl = 104; pX = 105; pT1 = 106; pT2 = 107; pA = 108; pB = 109; pC = 110; pD = 111; pX2 = 112; pDQ = 113; pLin = 114
vWl = 1; vX0 = 2; vQWl = 4; vQW = 5; vDQ = (11, 12, 3, 6); vDKa = 13; vDVa = 14; vDWs = 15
WF = 16; XT = 48; PK = 72; ACC = 80; XR = 176
def XF(k, rt):
    if k >= XREG: return V(XT + 4 * rt, 4)
    n = 6 * k + rt
    return A(4 * n, 4) if n < 64 else V(XR + 4 * (n - 64), 4)

def f2u(x): return struct.unpack('<I', struct.pack('<f', x))[0]
class Cfg: pass

def step_parts(s):
    if s == 0: return [('K', 0), ('W', 0)]
    if s <= 15: return [('K', s), ('W', s), ('V', s - 1)]
    if s == 16: return [('W', 16), ('V', 15)]
    if s == 17: return [('W', 17)]
    return [('F', 3 * (s - 18) + e) for e in range(3)]
def start(s): return sum(len(step_parts(x)) for x in range(s))
SEQ_N = [g for s in range(18) for g in step_parts(s)]
SEQ_L = [g for s in range(24) for g in step_parts(s)]
def gran(idx, last):
    if last: return SEQ_L[idx] if idx < len(SEQ_L) else None
    return SEQ_N[idx % 50]
NGE = [10]
def issue_range(s):
    hi = start(s) + NGE[0] - 1
    n = len(step_parts(s - 1)) if s else 1
    return range(hi - n + 1, hi + 1)

def head_of(plus, dst):
    o = [I('s_add_u32', S(sT0), S(sR), S(sHr))]
    if plus: o.append(I('s_add_u32', S(sT0), S(sT0), plus))
    return o + [I('s_and_b32', S(sT0), S(sT0), 3), I('s_lshl_b32', S(sT1), S(sG), 2), I('s_add_u32', S(dst), S(sT0), S(sT1))]
def setup_kv(plus):
    return head_of(plus, sT0) + [I('s_lshl_b32', S(sT1), S(sB), 5), I('s_add_u32', S(sT0), S(sT0), S(sT1)), I('s_lshl_b32', S(sKo), S(sT0), 17), I('s_mov_b32', S(sVo), S(sKo))]
def setup_wo():
    return head_of(0, sT0) + [I('s_mul_i32', S(sWoo), S(sT0), 147456), I('s_mov_b32', S(SWO + 2), WSIZE)]

jitc = [0]
def dma_gran(idx, last, cfg, role, r0=False):
    g = gran(idx, last)
    if g is None: return []
    ty, n = g
    if r0 and ty == 'W' and idx < 50:
        return [Mark(('main', True))]
    a = cfg.a
    cnt = a if role == 'A' else 8 - 3 * a
    o = []
    if idx >= 50 and g == ('K', 0): o += setup_kv(1)
    if idx >= 50 and g in (('W', 0), ('F', 0)): o += setup_wo()
    voff, srd, soff, step, fl = {'K': (vDK, SK, sKo, 1024, cfg.kvflags), 'V': (vDV, SV, sVo, 256, cfg.kvflags)}.get(ty, (vDW, SWO, sWoo, 1152, cfg.woflags if ty == 'W' else cfg.fflags))
    base = L_RING + (idx % NG) * TILE
    ps, sw = (PIECE, sWK) if ty == 'K' else (PT, sWT)
    for i in range(cnt):
        off = step * i; so = soff
        if off > 4095:
            o += [I('s_add_u32', 'm0', S(sw), base + i * ps), I('s_add_u32', S(sT2), S(soff), off)]; so = sT2; off = 0
        else:
            o += [I('s_add_u32', 'm0', S(sw), base + i * ps - off)]
        o.append(I('buffer_load_dwordx4', V(voff), S(srd, 4), S(so), mods=f"offen {'offset:%d ' % off if off else ''}{fl} lds", tag=('main', i == 0)))
    if cnt == 0: o.append(Mark(('main', True)))
    if ty in 'KV': o.append(I('s_add_u32', S(soff), S(soff), 8192))
    elif n % 2 == 0: o.append(I('s_add_u32', S(soff), S(soff), 73728))
    else: o.append(I('s_sub_u32', S(soff), S(soff), 73600))
    return o
def dma_after(s, last, cfg, role, r0=False):
    o = []
    for idx in issue_range(s): o += dma_gran(idx, last, cfg, role, r0)
    return o

def fixup(seq):
    out = []
    for it in seq:
        if it.kind == 'dma' and out and out[-1].kind == 'salu' and 'm0' in out[-1].writes:
            m = out[-1]
            p = out[-2] if len(out) > 1 else None
            if p is not None and p.kind in ('valu', 'trans', 'dsr', 'dsw', 'mfma', 'salu') and not (set(p.writes) & set(m.reads)) and 'm0' not in p.writes and 'm0' not in p.reads and not (p.kind == 'salu' and ('scc' in p.writes or p.op.startswith('s_cselect'))):
                out[-2], out[-1] = m, p
            else:
                out.append(I('s_nop', 0))
        out.append(it)
    return out
def front(gaps):
    for g in gaps:
        for i, it in enumerate(g):
            if it.kind in ('valu', 'trans'): continue
            if i and it.kind in ('salu', 'dsr', 'dma', 'wait'): g.insert(0, g.pop(i))
            break
    return gaps
def merge(a, b, ra=1, rb=1):
    a = list(a); b = list(b); o = []
    while a or b:
        o += a[:ra]; a = a[ra:]
        o += b[:rb]; b = b[rb:]
    return o

def barrier(s, lg, wq_ahead=None):
    def pred(op, ctx):
        if op['stream'] == 'main' and op['grp'] <= grp(ctx, 'need'): return True
        return False
    nfree = len(step_parts(s - 1)) if s else 1
    return [Mark(('need', True)) for _ in step_parts(s)] + [Wait(lg=lg, vm=pred), I('s_barrier', tag=('mbar', True))] + [Mark(('free', True)) for _ in range(nfree)]

def stamp(cfg, n): return [I(cfg.clk, S(sST + 2 * n, 2))] if cfg.stamps else []
def trace_init(cfg):
    return [I('s_mov_b32', S(100), 0), I('s_mov_b32', S(101), 0), I('v_mov_b32', V(vTr0), 0), I('v_mov_b32', V(vTr1), 0), I('s_memrealtime', S(96, 2)), I('s_memtime', S(98, 2)), I('s_waitcnt', 'lgkmcnt(0)')]
def trace_pt(cfg):
    if not cfg.trace: return []
    return [I('s_mov_b32', 'm0', S(101)), I('s_nop', 0), I('v_writelane_b32', V(vTr0), S(96), 'm0'), I('v_writelane_b32', V(vTr1), S(98), 'm0'), I('s_memrealtime', S(96, 2)), I('s_memtime', S(98, 2)),
            I('s_add_u32', S(100), S(100), 1), I('s_lshr_b32', S(101), S(100), 1) if cfg.trace == 2 else I('s_min_u32', S(101), S(100), 63)]
def lane_id(dst): return [I('v_mbcnt_lo_u32_b32', V(dst), -1, 0), I('v_mbcnt_hi_u32_b32', V(dst), -1, V(dst))]
def flush(cfg):
    o = []
    if cfg.dbgst:
        o += [I('s_waitcnt', 'vmcnt(0)'), I(cfg.clk, S(sST + 14, 2)), I('s_waitcnt', 'lgkmcnt(0)'), I('s_mov_b32', S(SDBG + 2), 256), I('s_mov_b32', S(SDBG + 3), '0x20000'),
              I('v_mov_b32', V(vT0), 0), I('s_cmp_eq_u32', S(sW), 0), I('s_cbranch_scc0', 'L_nodbg'), I('s_mov_b64', 'exec', 1), I('s_not_b32', S(sST), S(sST))]
        for j, n in enumerate((0, 2, 1, 5, 6, 3, 4, 7)):
            o += [I('v_mov_b32', V(32 + j), S(sST + 2 * n)), I('buffer_atomic_umax', V(32 + j), V(vT0), S(SDBG, 4), 0, mods=f"offen offset:{4 * j}")]
        o += [Label('L_nodbg')]
        return o
    if cfg.trace:
        o += [I('s_lshl_b32', S(sT0), S(2), 2), I('s_add_u32', S(sT0), S(sT0), S(sW)), I('s_lshl_b32', S(sT0), S(sT0), 9), I('s_add_u32', S(sT0), S(sT0), STAMP_OFF + 131072),
              I('s_mov_b32', S(SWS + 2), STAMP_OFF + 131072 + 524288)] + lane_id(vT0) + [I('v_lshlrev_b32', V(vT0), 2, V(vT0)),
              I('buffer_store_dword', V(vTr0), V(vT0), S(SWS, 4), S(sT0), mods="offen"), I('buffer_store_dword', V(vTr1), V(vT0), S(SWS, 4), S(sT0), mods="offen offset:256")]
    if cfg.stamps:
        o += [I('s_waitcnt', 'vmcnt(0)'), I(cfg.clk, S(sST + 14, 2)), I('s_waitcnt', 'vmcnt(0) lgkmcnt(0)'),
             I('s_lshl_b32', S(sT0), S(2), 2), I('s_add_u32', S(sT0), S(sT0), S(sW)), I('s_lshl_b32', S(sT0), S(sT0), 6),
             I('s_add_u32', S(sT0), S(sT0), STAMP_OFF), I('s_mov_b32', S(SWS + 2), STAMP_OFF + 65536), I('v_mov_b32', V(vT0), 0), I('s_mov_b64', 'exec', 1)]
        for q in range(4):
            o += [I('v_mov_b32', V(32 + 4 * q + i), S(sST + 4 * q + i)) for i in range(4)]
            o += [I('buffer_store_dwordx4', V(32 + 4 * q, 4), V(vT0), S(SWS, 4), S(sT0), mods=f"offen offset:{16 * q}")]
    return o

def fb(n): return FB + 4 * (n % 8)
def FBr(n): return V(fb(n), 4)
def rd_frag(idx, ty, i, n):
    pos = idx % NG
    hi = int(pos >= 5)
    base = (pos - 5 * hi) * TILE
    if ty == 'K':
        kt, ks = i // 4, i % 4
        return [I('ds_read_b128', V(fb(n), 4), V(vK[hi]), mods=f"offset:{base + kt * 4 * PIECE + ks * 64}")]
    if ty == 'V':
        return [I('ds_read_b64_tr_b16', V(fb(n) + 2 * u, 2), V(vV[hi]), mods=f"offset:{base + u * 512 + i * 32}") for u in range(2)]
    kq, nt = i // 4, i % 4
    return [I('ds_read_b64_tr_b16', V(fb(n) + 2 * u, 2), V(vW[hi]), mods=f"offset:{base + kq * 512 + u * 256 + nt * 32}") for u in range(2)]
def rd_Q(i): return [I('ds_read_b128', V(QF + 4 * i, 4), V(vQl), mods=f"offset:{1024 * i}")]
def mf_part(g, i, n, ct):
    ty, x = g
    if ty == 'K':
        kt, ks = i // 4, i % 4
        s = V(SB[x % 2] + 8 * ct + 4 * kt, 4)
        return I(MF, s, FBr(n), V(QF + 8 * ks + 4 * ct, 4), s if ks else ('0' if x == 0 else V(NEGM + 4 * ct, 4)))
    if ty == 'V':
        d = V(O + 32 * ct + 4 * i, 4)
        return I(MF, d, FBr(n), V(SB[x % 2] + 8 * ct, 4), '0' if x == 0 else d)
    kq, nt = i // 4, i % 4
    d = OUT(4 * (x // 2) + nt, ct)
    return I(MF, d, FBr(n), V(OB + 16 * (x % 2) + 8 * kq + 4 * ct, 4), d)

def softmax_list(g):
    o = []
    for ct in range(2):
        s = SB[g % 2] + 8 * ct
        for k in range(4):
            o += [I('v_exp_f32', V(s + 2 * k), V(s + 2 * k)), I('v_exp_f32', V(s + 2 * k + 1), V(s + 2 * k + 1)),
                  I('v_add_f32', V(vL[ct]), V(vL[ct]), V(s + 2 * k)), I('v_add_f32', V(vL[ct]), V(vL[ct]), V(s + 2 * k + 1)),
                  I('v_cvt_pk_bf16_f32', V(s + k), V(s + 2 * k), V(s + 2 * k + 1))]
    return o
def softmax_split(g):
    a = []; b = []
    for ct in range(2):
        s = SB[g % 2] + 8 * ct
        E = [I('v_exp_f32', V(s + i), V(s + i)) for i in range(8)]
        Ad = [I('v_add_f32', V(vL[ct]), V(vL[ct]), V(s + i)) for i in range(8)]
        C = [I('v_cvt_pk_bf16_f32', V(s + k), V(s + 2 * k), V(s + 2 * k + 1)) for k in range(4)]
        a += E[0:3] + Ad[0:2] + [C[0], E[3], E[4]] + Ad[2:4] + [C[1], E[5], E[6], C[2], E[7]] + [Ad[4], C[3]]
        b += Ad[5:8]
    return a, b
def max_chain(dst, s, n):
    o = [I('v_max3_f32', V(dst), V(s), V(s + 1), V(s + 2))]
    for i in range(3, n - 1, 2): o.append(I('v_max3_f32', V(dst), V(dst), V(s + i), V(s + i + 1)))
    o.append(I('v_max_f32', V(dst), V(dst), V(s + n - 1)))
    return o
def max_list(g): return max_chain(vMx, SB[g % 2], 16)
def xreduce(op, r0, r1):
    o = []
    for sw in ('v_permlane32_swap_b32', 'v_permlane16_swap_b32'):
        o += [I('v_mov_b32', V(vT0), V(r0)), I('v_mov_b32', V(vT1), V(r1)), I('s_nop', 0), I(sw, V(vT0), V(r0)), I(sw, V(vT1), V(r1)),
              I(op, V(r0), V(r0), V(vT0)), I(op, V(r1), V(r1), V(vT1))]
    return o
def row_max(par): return merge(max_chain(vM[0], SB[par], 8), max_chain(vM[1], SB[par] + 8, 8)) + xreduce('v_max_f32', vM[0], vM[1])
def norm_part(kq, src, dst):
    o = []
    for ct in range(2):
        b = O + 32 * ct + 8 * kq
        o += [I('v_mul_f32', V(b + i), src(ct), V(b + i)) for i in range(8)]
        o += [I('v_cvt_pk_bf16_f32', V(dst + 8 * kq + 4 * ct + k), V(b + 2 * k), V(b + 2 * k + 1)) for k in range(4)]
    return o

def store_q(p, q, cfg):
    ct, hf = q // 2, q % 2
    tmp = O + 16 * q; pk = tmp + 8
    o = []
    for j in range(2):
        t = 2 * (4 * p + 2 * hf + j) + ct
        for k in range(2):
            if t < 64:
                o += [I('v_accvgpr_read_b32', V(tmp + 4 * j + 2 * k + e), A(4 * t + 2 * k + e)) for e in range(2)]
                src = tmp + 4 * j + 2 * k
            else: src = 224 + 4 * (t - 64) + 2 * k
            o += [I('v_cvt_pk_bf16_f32', V(pk + 2 * j + k), V(src), V(src + 1))]
    o.append(I('buffer_store_dwordx4', V(pk, 4), V(vQl), S(SWS, 4), S(sSt), mods=f"offen {'offset:%d ' % (1024 * q) if q else ''}{cfg.stflags}"))
    if q == 3: o.append(I('s_add_u32', S(sSt), S(sSt), 32768))
    return o
def store_pair(p, cfg): return [x for q in range(4) for x in store_q(p, q, cfg)]

rare_sites = []
def split_dma(d, frac):
    idx = [i for i, x in enumerate(d) if x.kind == 'dma']
    if len(idx) < 2: return d, []
    n = max(1, int(len(idx) * frac + 0.5))
    c = idx[n - 1] + 1
    return d[:c], d[c:]

def a_step(s, cfg, last, r0=False):
    def real(x, first_round):
        return [(start(x) + e, g) for e, g in enumerate(step_parts(x % 18 if not last else x)) if not (first_round and g[0] == 'W')]
    parts = real(s, r0); L = 8 * len(parts)
    final = last and s == 23
    nxt = s + 1 if (last or s < 17) else 0
    nparts = real(s + 1, r0 and s < 17)
    FR = cfg.frac
    head = split_dma(dma_after(s, last, cfg, 'A', r0), FR)[1]
    tail = []; nreads = [[] for _ in range(8)]
    if not final:
        tail = split_dma(dma_after(s + 1, last, cfg, 'A', r0), FR)[0]
        if nparts:
            nreads = [rd_frag(nparts[0][0], nparts[0][1][0], i, i) + (rd_Q(i) if nxt == 0 else []) for i in range(8)]
    name = f"s{s}{'l' if last and s >= 13 else ''}{'z' if r0 else ''}"
    nl = lambda kq: norm_part(kq, lambda ct: V(vL[ct]), OB)
    if L == 0:
        seq = fixup(head) + nl(0) + barrier(nxt, 0) + trace_pt(cfg) + [x for r in nreads for x in r] + fixup(merge(tail, nl(1) + nl(2) + nl(3), 1, 4)) + [I('s_nop', 0)]
        return [I('s_nop', 4)] + seq
    M = 2 * L
    mf = [mf_part(parts[n // 16][1], (n // 2) % 8, n // 2, n % 2) for n in range(M)]
    gaps = [[] for _ in range(M)]
    for n in range(8, L): gaps[2 * (n - 8) + 1] += rd_frag(parts[n // 8][0], parts[n // 8][1][0], n % 8, n)
    b = L - 6
    if not final:
        gaps[2 * b + 1] += barrier(nxt, 0) + trace_pt(cfg)
        for i in range(8): gaps[2 * (b + max(0, i - 2)) + 1 + (0 if i != 2 else 1 if len(nreads[2]) > 1 else 0)] += nreads[i]
    hq = (dma_chunks(head), 0, 2 * b - 1); tq = (dma_chunks(tail), 2 * b + 2, M - 1)
    post = []; pre = []; qs = []
    red = xreduce('v_add_f32', vL[0], vL[1]) + [I('v_rcp_f32', V(vL[0]), V(vL[0])), I('v_rcp_f32', V(vL[1]), V(vL[1]))]
    if s == 0:
        qs.append(([I('v_mov_b32', V(vL[0]), 0), I('v_mov_b32', V(vL[1]), 0)], 0, 15))
        x = row_max(0)
        x += [I('v_sub_f32', V(NEGM + i), 0, V(vM[i // 4])) for i in range(8)] + [I('v_sub_f32', V(SB[0] + i), V(SB[0] + i), V(vM[i // 8])) for i in range(16)]
        if r0: post = [I('s_nop', 6)] + x + [I('s_nop', 0)]
        else:
            k = cfg.k0
            qs.append((x[:k], 19, 31)); post = x[k:] + [I('s_nop', 0)]
    elif s <= 15:
        sa, sb = softmax_split(s - 1)
        mx = max_list(s) + [I('v_cmp_lt_f32', 'vcc', S(sT), V(vMx))]
        if r0: qs += [(sa, 0, 14), (sb + mx, 19, 31)]
        else: qs += [(sa, 0, 30), (merge(sb, mx), 32, 47)]
        post = [I('s_cbranch_vccnz', f"L_rare_{name}"), Label(f"L_back_{name}")]
        rare_sites.append((name, s % 2))
    elif s == 16:
        sa, sb = softmax_split(15)
        if r0:
            pre = sa + [I('s_nop', 0)]; qs.append((sb + red, 0, 15))
        else: qs += [(sa, 0, 14), (sb + red, 16, 31)]
    elif s == 17:
        qs.append((nl(0) + nl(1), 3, 15))
        post = nl(2) + nl(3) + [I('s_nop', 0)]
        if last: post = lane_id(vQl) + [I('v_lshlrev_b32', V(vQl), 4, V(vQl))] + post
    else:
        for e, (_, (ty, x)) in enumerate(parts):
            xp = x - 1
            if xp >= 1 and xp % 2 == 1:
                sp = store_pair(xp // 2, cfg)
                if e < 2: qs.append((sp, 16 * e + 3, 16 * e + 31))
                else:
                    k = len(sp) if final else len(sp) // 2
                    qs.append((sp[:k], 16 * e + 3, M - 1))
            elif e == 0 and xp >= 2:
                sp = store_pair(xp // 2 - 0 - 1 + 0, cfg)
                qs.append((sp[len(sp) // 2:], 0, 15))
        if final: post = [I('s_nop', 7)] + store_pair(8, cfg)
    grp_ = []; cur = []
    for c in hq[0]:
        cur += c
        if any(x.kind == 'dma' for x in c): grp_.append(cur); cur = []
    if cur:
        if grp_: grp_[-1] += cur
        else: grp_.append(cur)
    h0 = int(b * cfg.hstart); span = max(1, int(b * cfg.hspan) - h0)
    for i, c in enumerate(grp_): gaps[2 * (h0 + (i * span) // len(grp_))] += c
    schedule(gaps, qs + [tq])
    front(gaps)
    for n in range(0, L, 4):
        if n > b and not final: break
        cov = [FBr(x) for x in range(n, min(n + 4, (b + 1) if (n + 4 > b + 1 and not final) else n + 4))]
        if s == 0 and n == 0: cov += [V(QF, 32)]
        mf[2 * n] = [Wait(lg=cov), mf[2 * n]]
    return pre + fixup(interleave(mf, gaps)) + post

def rare_body(par):
    s = SB[par]
    o = [I('s_nop', 7)] + row_max(par)
    for ct in range(2):
        o += [I('v_max_f32', V(vM[ct]), 0, V(vM[ct]))]
        o += [I('v_sub_f32', V(s + 8 * ct + i), V(s + 8 * ct + i), V(vM[ct])) for i in range(8)]
        o += [I('v_sub_f32', V(NEGM + 4 * ct + i), V(NEGM + 4 * ct + i), V(vM[ct])) for i in range(4)]
        o += [I('v_sub_f32', V(vT0), 0, V(vM[ct])), I('v_exp_f32', V(vT0), V(vT0)), I('s_nop', 0), I('v_mul_f32', V(vL[ct]), V(vL[ct]), V(vT0))]
        o += [I('v_mul_f32', V(O + 32 * ct + i), V(O + 32 * ct + i), V(vT0)) for i in range(32)]
    o += [I('s_nop', 1)]
    return o
def rare_code():
    o = []
    for name, par in rare_sites:
        o += [Label(f"L_rare_{name}"), I('s_call_b64', S(sRET, 2), f"L_rare_sub{par}"), I('s_branch', f"L_back_{name}")]
    for par in range(2):
        o += [Label(f"L_rare_sub{par}")] + rare_body(par) + [I('s_setpc_b64', S(sRET, 2))]
    return o

RP = lambda p: L_RING + p * TILE
WQ0 = [L_WQ, L_WQ + 2 * KWQ, L_WQ + 4 * KWQ, L_QB, L_QB + 2 * KWQ, RP(6), RP(7), RP(8), RP(9), L_WQ, L_WQ + 2 * KWQ, L_WQ + 4 * KWQ, L_QB, L_QB + 2 * KWQ, RP(6), RP(9), RP(1), RP(8)]
def wq0_loc(k): return WQ0[k]
XLOC = [RP(0), RP(3), RP(0), RP(3), L_XP]
XNEED = [0, 4, 8, 12, 14]
def xks(D): return range(4 * D, min(4 * D + 4, XREG)) if D < 4 else range(XREG, NKS)
PSCHED = {-1: ['x0', 'g0', 'g1', 'g2', 'g3', 'x1'], 0: ['g4', 'g5'], 1: ['g6', 'x2'], 2: ['g7'], 3: ['g8', 'g9'], 4: ['g10'], 5: ['x3', 'g11'], 6: ['g12', 'x4'], 7: ['g13'],
          8: ['g14'], 9: ['g15', 'g16'], 10: ['g17', 'm0'], 11: ['m1'], 12: ['q0', 'm2', 'm3'], 13: ['q1', 'm4'], 14: ['q2', 'm5', 'm6'], 15: ['q3', 'm7'], 16: ['q4', 'q5'], 17: []}
def check_psched():
    occ = []
    seen = []
    for j in sorted(PSCHED):
        for it in PSCHED[j]:
            k = int(it[1:])
            if it[0] == 'x': lo, n, rel, need = XLOC[k], 3 * TILE, (XNEED[k] + 1 if k < 4 else 99), XNEED[k]
            elif it[0] == 'g': lo, n, rel, need = wq0_loc(k), 2 * KWQ, k + 1, k
            elif it[0] == 'q': lo, n, rel, need = L_WQ + k * KWQ, KWQ, 99, 18
            elif SEQ_N[k][0] == 'W': continue
            else: lo, n, rel, need = RP(k), TILE, 99, 18
            assert need > j, (it, j)
            for a, b, r in occ: assert b <= lo or lo + n <= a or r <= j, (it, j, a, b, r)
            occ.append((lo, lo + n, rel)); seen.append(it)
    for kind, n in (('x', 5), ('g', 18), ('q', 6)): assert [x for x in seen if x[0] == kind] == [kind + str(i) for i in range(n)]
def pro_item(it, cfg, role):
    k = int(it[1:]); o = []
    if it[0] == 'x':
        col = 256 * k if k < 4 else 896
        for w in range(3):
            for i in range(2):
                o += [I('s_add_u32', 'm0', S(sWX), XLOC[k] + w * TILE + i * PIECE), I('s_add_u32', S(sT2), S(sXb), (32 * w + 4 * i) * 1152 + col),
                      I('buffer_load_dwordx4', V(pX2 if k == 3 else pX), S(SX, 4), S(sT2), mods=f"offen {cfg.xflags} lds", tag=('p%d' % XNEED[k], False))]
    elif it[0] == 'g':
        for hh in range(2):
            o += [I('s_add_u32', 'm0', S(sWP), wq0_loc(k) + hh * (KWQ - 128)),
                  I('buffer_load_dwordx4', V(pDQ), S(SWQ, 4), S(sPq), mods=f"offen {'offset:128 ' if hh else ''}{cfg.pflags} lds", tag=('p%d' % k, False))]
        o += [I('s_add_u32', S(sPq), S(sPq), 262144)]
    elif it[0] == 'm': o = dma_gran(k, False, cfg, role, True)
    elif it[0] == 'q': o = dma_wq(k, cfg) if role == 'Q' and k < cfg.la else []
    elif it[0] == 'b':
        o = [I('s_mov_b32', 'm0', L_QB + 17408), I('s_nop', 0)]
        for e in range(3):
            o += [I('buffer_load_dwordx4', V(pLin), S(SPF, 4), S(sPf0), mods=f"offen {'offset:%d ' % (1024 * e) if e else ''}{fl} lds") for fl in ('nt', 'sc1')]
        o += [I('s_add_u32', S(sPf0), S(sPf0), 3072)]
    return o
def pro_items(j, cfg, role):
    o = []
    for it in PSCHED[j] + ['b%d' % e for e in range(3) if cfg.bpos + e * cfg.bstep == j]: o += pro_item(it, cfg, role)
    return o
def pbarrier(j): return [Wait(lg=0, vm=lambda op, ctx: op['stream'] is not None and op['stream'][0] == 'p' and int(op['stream'][1:]) <= j), I('s_barrier', tag=('xbar', True))]

def a_prologue(cfg):
    pro = []
    w = sW
    tp = lambda: trace_pt(cfg) if cfg.trace == 1 else []
    pro += [I('s_lshl_b32', S(sT0), S(w), 13), I('s_add_u32', S(sT0), S(sT0), L_QB), I('v_add_u32', V(vQl), S(sT0), V(pLin)),
            I('s_mul_i32', S(sT0), S(sGam), 27), I('s_mul_i32', S(sT1), S(w), 9), I('s_add_u32', S(sT0), S(sT0), S(sT1)),
            I('s_lshl_b32', S(sT0), S(sT0), 3), I('s_add_u32', S(sT0), S(sT0), S(sG)), I('s_lshl_b32', S(sSt), S(sT0), 12)]
    if cfg.pf:
        pro += [I('s_getpc_b64', S(68, 2)), Label('L_pcref'), I('s_mov_b32', S(70), 'L_exit-L_pcref'), I('s_mov_b32', S(71), '0x20000'),
                I('s_lshr_b32', S(sT0), S(2), 3), I('s_mul_i32', S(sT0), S(sT0), 3), I('s_add_u32', S(sT0), S(sT0), S(w)), I('s_lshl_b32', S(sT0), S(sT0), 10),
                I('s_mov_b32', 'm0', L_QB + 17408), I('s_nop', 0), I('buffer_load_dwordx4', V(pLin), S(68, 4), S(sT0), mods="offen lds")]
    if cfg.trace == 1: pro += trace_init(cfg)
    for h in range(2):
        pro += [I('v_add_u32', V(vK[h]), L_RING + 5 * h * TILE, V(pKl)), I('v_add_u32', V(vV[h]), L_RING + 5 * h * TILE, V(pVl)), I('v_add_u32', V(vW[h]), L_RING + 5 * h * TILE, V(pWol))]
    SEG = 61440
    pro += [I('v_add_u32', V(pA), SEG, V(pWl)), I('v_add_u32', V(pB), 2 * SEG, V(pWl)),
            I('s_mul_i32', S(sT1), S(w), TILE), I('s_add_u32', S(sT0), S(sT1), L_RING), I('v_add_u32', V(pC), S(sT0), V(pKl)), I('s_add_u32', S(sT0), S(sT1), L_XP), I('v_add_u32', V(pD), S(sT0), V(pKl))]
    pro += [I('v_accvgpr_write_b32', A(i), 0) for i in range(144, 256)] + [I('v_mov_b32', V(224 + i), 0) for i in range(32)]
    bank = lambda j, n: (FB if j % 2 == 0 else SB[0]) + 4 * n
    def rd0(j, n):
        loc = wq0_loc(j); sg = loc // SEG
        return [I('ds_read_b64_tr_b16', V(bank(j, n) + 2 * v, 2), V((pWl, pA, pB)[sg]), mods=f"offset:{loc - sg * SEG + (n // 4) * KWQ + (n % 4) * 32 + v * 256}") for v in range(2)]
    def rdx(j):
        if j not in XNEED: return []
        D = XNEED.index(j)
        return [I('ds_read_b128', A(8 * k + 4 * ct, 4), V(pC if D < 4 else pD), mods=f"offset:{(XLOC[D] - L_RING if D < 4 else 0) + ct * 4 * PIECE + 64 * i}") for i, k in enumerate(xks(D)) for ct in range(2)]
    def mf0(j, n, ct):
        d = V(O + 32 * ct + 4 * n, 4)
        return I(MF, d, V(bank(j, n), 4), A(8 * j + 4 * ct, 4), d if j else '0')
    pro += pbarrier(0) + stamp(cfg, 2) + tp() + rdx(0) + [x for n in range(8) for x in rd0(0, n)] + fixup(pro_items(0, cfg, 'A'))
    for j in range(1, 19):
        gaps = [[] for _ in range(16)]
        qs = []
        if j < 18:
            pro += pbarrier(j) + tp()
            qs += [([x for n in range(8) for x in rd0(j, n)] + rdx(j), 0, 11), (dma_chunks(pro_items(j, cfg, 'A')), 0, 15)]
        else:
            if cfg.trace == 2: pro += trace_init(cfg)
            pro += barrier(0, 0) + stamp(cfg, 1) + trace_pt(cfg)
            qs += [([x for n in range(8) for x in rd_frag(0, 'K', n, n)], 0, 11), (dma_chunks(split_dma(dma_after(0, False, cfg, 'A', True), cfg.frac)[0]), 0, 15)]
        if j >= 2: qs.append(([I('v_accvgpr_write_b32', A(8 * (j - 2) + i), 0) for i in range(8)], 4, 15))
        schedule(gaps, qs); front(gaps)
        pro += fixup(interleave([mf0(j - 1, n // 2, n % 2) for n in range(16)], gaps))
    pro += [I('v_accvgpr_write_b32', A(8 * 17 + i), 0) for i in range(8)]
    for kq in range(4):
        pro += norm_part(kq, lambda ct: S(sC), QF) + [I('s_nop', 0)]
        for sw in ('v_permlane32_swap_b32', 'v_permlane16_swap_b32'):
            pro += [I(sw, V(QF + 8 * kq + 4 * ct + e), V(QF + 8 * kq + 4 * ct + e + 2)) for ct in range(2) for e in range(2)]
    pro += [I('s_nop', 1)]
    return pro

def tail_ptrs(cfg): return [I('s_load_dwordx2', S(SOUT, 2), S(0, 2), 80), I('s_load_dwordx2', S(SDBG, 2), S(0, 2), 88)]
def reduce_body(cfg):
    u = sT2; ln = 8; sDone = 68; sNew = 69; sFl = 70; sOwn = 71; sCnt = 72; sBase = 73; acc = 160
    o = [I('v_mov_b32', V(4), 0), I('ds_read_b32', V(5), V(4)),
         I('s_mov_b32', S(SOUT + 2), 16 * 96 * 1152 * 2), I('s_mov_b32', S(SOUT + 3), '0x20000')] + lane_id(ln) + [
         I('v_lshlrev_b32', V(9), 4, V(ln)), I('v_lshlrev_b32', V(3), 2, V(ln)),
         I('s_lshl_b32', S(sFl), S(sGam), 3), I('s_add_u32', S(sFl), S(sFl), S(sG)), I('s_lshl_b32', S(sFl), S(sFl), 8), I('s_add_u32', S(sFl), S(sFl), FLAG_OFF),
         I('s_lshl_b32', S(sOwn), 1, S(sG)), I('s_mov_b32', S(sDone), 0), I('s_mov_b32', S(sCnt), 0), I('s_mov_b32', S(67), '0xffff0000'),
         I('s_waitcnt', 'lgkmcnt(0)'), I('v_readfirstlane_b32', S(u), V(5)), I('s_and_b32', S(u), S(u), 31), I('s_add_u32', S(u), S(u), S(sW)),
         I('s_cmp_ge_u32', S(u), 27), I('s_cbranch_scc1', 'L_done'),
         I('s_mul_i32', S(sBase), S(sGam), 27), I('s_add_u32', S(sBase), S(sBase), S(u)), I('s_lshl_b32', S(sBase), S(sBase), 15),
         Label('L_poll'), I('s_mov_b64', 'exec', 255),
         I('buffer_load_dword', V(6), V(3), S(SWS, 4), S(sFl), mods="offen sc1")]
    o += [NoTrace([])]
    o += [I('s_waitcnt', 'vmcnt(0)'), I('v_cmp_eq_u32', 'vcc', 1, V(6)), I('s_mov_b64', 'exec', -1), I('s_add_u32', S(sCnt), S(sCnt), 1), I('s_nop', 1),
          I('s_and_b32', S(sNew), 'vcc_lo', 255), I('s_or_b32', S(sNew), S(sNew), S(sOwn)), I('s_andn2_b32', S(sNew), S(sNew), S(sDone)),
          I('s_cmp_lg_u32', S(sNew), 0), I('s_cbranch_scc1', 'L_have'),
          NoTrace([I('s_sleep', cfg.psleep), I('s_cmp_lt_u32', S(sCnt), 0x100000), I('s_cbranch_scc1', 'L_poll'), I('s_branch', 'L_done')]),
          Label('L_have'), I('s_mov_b32', S(sT0), S(sBase))]
    for g in range(8):
        o += [I('s_bitcmp1_b32', S(sNew), g), I('s_cbranch_scc0', f'L_nl{g}')]
        o += [I('buffer_load_dwordx4', V(32 + 16 * g + 4 * q, 4), V(9), S(SWS, 4), S(sT0), mods=f"offen {'offset:%d ' % (1024 * q) if q else ''}{cfg.rdflags}") for q in range(4)]
        o += [Label(f'L_nl{g}'), I('s_add_u32', S(sT0), S(sT0), 4096)]
    o += [I('s_cmp_lg_u32', S(sDone), 0), I('s_cbranch_scc1', 'L_notfirst')]
    o += [I('v_mov_b32', V(acc + i), 0) for i in range(32)]
    o += [I('s_mul_hi_u32', S(64), S(u), 477218589), I('s_mul_i32', S(65), S(64), 9), I('s_sub_u32', S(65), S(u), S(65)),
          I('s_mul_i32', S(66), S(sB), 96), I('s_lshl_b32', S(64), S(64), 5), I('s_add_u32', S(66), S(66), S(64)), I('s_mul_i32', S(66), S(66), 2304),
          I('s_mul_i32', S(64), S(sBlk), 1152), I('s_add_u32', S(66), S(66), S(64)), I('s_lshl_b32', S(65), S(65), 7), I('s_add_u32', S(66), S(66), S(65)),
          I('v_and_b32', V(4), 15, V(ln)), I('v_mul_u32_u24', V(4), 2304, V(4)), I('v_lshrrev_b32', V(5), 5, V(ln)), I('v_lshl_add_u32', V(4), V(5), 4, V(4)),
          I('v_bfe_u32', V(5), V(ln), 4, 1), I('v_lshl_add_u32', V(4), V(5), 5, V(4)), I('v_add_u32', V(5), 16 * 2304, V(4)),
          Label('L_notfirst'), I('s_or_b32', S(sDone), S(sDone), S(sNew)), I('s_waitcnt', 'vmcnt(0)')]
    for g in range(8):
        o += [I('s_bitcmp1_b32', S(sNew), g), I('s_cbranch_scc0', f'L_na{g}')]
        for d in range(16):
            src = V(32 + 16 * g + d)
            o += [I('v_lshlrev_b32', V(6), 16, src), I('v_and_b32', V(7), S(67), src),
                  I('v_add_f32', V(acc + 2 * d), V(acc + 2 * d), V(6)), I('v_add_f32', V(acc + 2 * d + 1), V(acc + 2 * d + 1), V(7))]
        o += [Label(f'L_na{g}')]
    o += [I('s_cmp_lg_u32', S(sDone), 255), I('s_cbranch_scc1', 'L_poll')]
    for q in range(4):
        pk = 192 + 4 * q
        o += [I('v_cvt_pk_bf16_f32', V(pk + i), V(acc + 8 * q + 2 * i), V(acc + 8 * q + 2 * i + 1)) for i in range(4)]
        o += [I('s_nop', 1), I('v_permlane16_swap_b32', V(pk), V(pk + 2)), I('v_permlane16_swap_b32', V(pk + 1), V(pk + 3)),
              I('buffer_store_dwordx4', V(pk, 4), V(4 + q // 2), S(SOUT, 4), S(66), mods=f"offen {'offset:64 ' if q % 2 else ''}{cfg.oflags}")]
    return o

def build_a(cfg):
    pro = a_prologue(cfg)
    com = []; nrm = []; lst = []
    steps = {}
    for s in range(13): steps[s] = a_step(s, cfg, False); com += steps[s]
    for s in range(13, 18): steps[s] = a_step(s, cfg, False); nrm += steps[s]
    for s in range(13, 24):
        lst += a_step(s, cfg, True)
        if s == 17: lst += stamp(cfg, 3)
    cfg.a_round = com + nrm
    chk = [I('s_cmp_eq_u32', S(sR), 3), I('s_cbranch_scc1', 'L_alast')]
    nxt = [I('s_add_u32', S(sR), S(sR), 1)]
    rs = []
    if cfg.stamps:
        for rr, n in ((1, 5), (3, 6)):
            rs += [I('s_cmp_eq_u32', S(sR), rr), I('s_cbranch_scc0', f'L_nost{n}')] + stamp(cfg, n) + [Label(f'L_nost{n}')]
    cfg.red = reduce_body(cfg)
    if cfg.r0:
        for s in range(18): pro += a_step(s, cfg, False, True)
        pro += nxt + stamp(cfg, 5)
    prog = pro + [Label("L_around"), Loop(2 if cfg.r0 else 3, com + chk + nrm + nxt + [NoTrace(rs + [I('s_branch', 'L_around')])]), Seq(com + chk), Label("L_alast")] + tail_ptrs(cfg) + lst + stamp(cfg, 4)
    prog += [I('s_waitcnt', 'vmcnt(0)'), I('s_barrier'), Label('L_reduce')] + cfg.red + [Label('L_done')]
    prog += flush(cfg) + [I('s_endpgm'), NoTrace(rare_code())]
    return prog

def wf(k, dt): return WF + 16 * (k & 1) + 4 * dt
def rd_wq(k):
    o = []
    for dt in range(4):
        for v in range(2):
            o.append(I('ds_read_b64_tr_b16', V(wf(k, dt) + 2 * v, 2), V(vWl), mods=f"offset:{(k % WQRING) * KWQ + v * 256 + dt * 32}", tag=('wqr', dt == 0 and v == 0)))
    return o
def rd_xp(k, rt):
    if k < XREG: return []
    return [I('ds_read_b128', XF(k, rt), V(vX0), mods=f"offset:{(rt // 2) * TILE + (rt % 2) * 4 * PIECE + 64 * (k - XREG)}")]
def next_half_salu():
    return [I('s_add_u32', S(sEta), S(sEta), 1), I('s_lshr_b32', S(sT0), S(sEta), 1), I('s_add_u32', S(sT0), S(sT0), S(sHr)), I('s_and_b32', S(sT0), S(sT0), 3),
            I('s_lshl_b32', S(sT1), S(sG), 2), I('s_add_u32', S(sT0), S(sT0), S(sT1)), I('s_lshl_b32', S(sT0), S(sT0), 8),
            I('s_xor_b32', S(sT1), S(sEta), S(sRot)), I('s_and_b32', S(sT1), S(sT1), 1), I('s_lshl_b32', S(sT1), S(sT1), 7), I('s_add_u32', S(sWqo), S(sT0), S(sT1)),
            I('s_cmp_ge_u32', S(sEta), 8), I('s_cselect_b32', S(SWQ + 2), 0, S(SWQ + 2))]
def dma_wq(k, cfg):
    o = []
    if k % NKS == 0: o += next_half_salu()
    for i in range(4):
        o += [I('s_mov_b32', 'm0', L_WQ + (k % WQRING) * KWQ + i * PT),
              I('buffer_load_dwordx4', V(vDQ[i]), S(SWQ, 4), S(sWqo), mods=f"offen {cfg.wflags} lds", tag=('wq', i == 0))]
    o += [I('s_add_u32', S(sWqo), S(sWqo), 262144)]
    return o
def wq_wait(n): return Wait(vm=lambda op, ctx: op['stream'] == 'wq' and op['grp'] <= grp(ctx, 'wqr') + n)
def epi_tile(rt):
    a = ACC + 16 * rt; o = []
    for h in range(2):
        pk = PK + 4 * h
        o += [I('v_mul_f32', V(a + 8 * h + i), S(sC), V(a + 8 * h + i)) for i in range(8)]
        o += [I('v_cvt_pk_bf16_f32', V(pk + k), V(a + 8 * h + 2 * k), V(a + 8 * h + 2 * k + 1)) for k in range(4)]
        o += [I('ds_write_b64', V(vQW), V(pk + 2 * be, 2), mods=f"offset:{(rt // 2) * 8192 + (2 * h + rt % 2) * 1024 + be * 512}") for be in range(2)]
    return o
def chunks(x, n): return [x[i:i + n] for i in range(0, len(x), n)]

def q_round(cfg):
    slots = []
    epi_hd = lambda: [I('v_add_u32', V(vQW), S(sHalf), V(vQWl)), I('s_xor_b32', S(sHalf), S(sHalf), 4096)]
    for kk in range(2 * NKS):
        k = kk % NKS; k1 = (k + 1) % NKS
        gaps = [[] for _ in range(24)]
        gaps[0].append(wq_wait(1))
        for i, x in enumerate(rd_wq(k1)): gaps[1 + 2 * i].append(x)
        for rt in range(6): gaps[4 * rt + 3] += rd_xp(k1, rt)
        wl = dma_wq(k + cfg.la, cfg)
        cuts = [0] + [i + 1 for i, x in enumerate(wl) if x.kind == 'dma'][:3] + [len(wl)]
        for i in range(24):
            rt, dt = i // 4, i % 4
            acc = V(ACC + 4 * i, 4)
            m = I(MF, acc, V(wf(k, dt), 4), XF(k, rt), acc if k else '0')
            pre = []
            if i == 0: pre = [Wait(lg=[V(wf(k, 0), 16)] + ([XF(k, x) for x in range(4)] if k >= XREG else []))]
            if i == 16 and k >= XREG: pre = [Wait(lg=[XF(k, 4), XF(k, 5)])]
            if kk == NKS and dt == 0:
                e = (epi_hd() if i == 0 else []) + epi_tile(rt)
                for c in chunks(e, 4): slots.append([[], None, c, []])
            slots.append([pre, m, gaps[i], wl[cuts[i // 6]:cuts[i // 6 + 1]] if i % 6 == 2 else []])
    e = epi_hd()
    for rt in range(6): e += epi_tile(rt)
    for c in chunks(e, 4): slots.append([[], None, c, []])
    tr = []; flatten(cfg.a_round, tr)
    bpos = [i for i, x in enumerate(tr) if x.kind == 'barrier']
    tot = cost(tr); t0 = tot - cost(tr[:bpos[-1] + 1])
    tgt = [(cost(tr[:p + 1]) + t0) / tot for p in bpos[:-1]]
    sc = [max(16 if sl[1] else 0, (8 if sl[1] else 0) + 4 * sum(weight(x) for x in sl[0] + sl[2])) for sl in slots]
    cum = []; c = 0
    for x in sc: cum.append(c); c += x
    bslot = [0] + [min(range(len(slots)), key=lambda i: abs(cum[i] / c - t)) for t in tgt] + [len(slots)]
    out = []
    for s in range(18):
        seg = slots[bslot[s]:bslot[s + 1]]
        d = dma_after(s, False, cfg, 'Q')
        gl = [list(sl[2]) for sl in seg]
        mfs = [i for i, sl in enumerate(seg) if sl[1] is not None and not sl[3]] or list(range(len(seg)))
        ch = []; cur = []
        for it in d:
            cur.append(it)
            if it.kind == 'dma': ch.append(cur); cur = []
        if cur:
            if ch: ch[-1] += cur
            else: ch.append(cur)
        q0 = int(len(mfs) * cfg.qstart); span = max(1, int(len(mfs) * cfg.qspan) - q0)
        for i, cc in enumerate(ch): gl[mfs[q0 + (i * span) // len(ch)]] += cc
        seq = barrier(s, 0 if s == 0 else None)
        for sl, g in zip(seg, gl):
            seq += sl[0] + ([sl[1]] if sl[1] is not None else []) + g + sl[3]
        out += fixup(seq)
    return out

def build_q(cfg):
    pro = [I('v_mov_b32', V(vWl), V(pWl)),
           I('v_and_b32', V(pT1), 15, V(pLane)), I('v_lshlrev_b32', V(vQWl), 4, V(pT1)), I('v_lshrrev_b32', V(pT1), 5, V(pLane)), I('v_lshl_add_u32', V(vQWl), V(pT1), 8, V(vQWl)),
           I('v_bfe_u32', V(pT1), V(pLane), 4, 1), I('v_lshl_add_u32', V(vQWl), V(pT1), 3, V(vQWl)), I('v_add_u32', V(vQWl), L_QB, V(vQWl)),
           I('v_subrev_u32', V(vDQ[0]), 3 * 8192, V(pDQ))]
    pro += [I('v_add_u32', V(vDQ[i]), 8192 * i, V(vDQ[0])) for i in range(1, 4)]
    pro += [I('s_lshr_b32', S(sRot), S(sB), 2), I('s_and_b32', S(sRot), S(sRot), cfg.hrot), I('s_lshl_b32', S(sHalf), S(sRot), 12), I('s_mov_b32', S(sEta), 1),
            I('v_add_u32', V(pC), L_RING, V(pKl)), I('v_add_u32', V(vX0), L_XP, V(pKl))]
    assert NGE[0] == 9 and cfg.r0
    pro += tail_ptrs(cfg) + [I('s_lshl_b32', S(sSt), S(sGam), 3), I('s_add_u32', S(sSt), S(sSt), S(sG)), I('s_lshl_b32', S(sSt), S(sSt), 8), I('s_add_u32', S(sSt), S(sSt), FLAG_OFF),
            I('v_lshlrev_b32', V(pT1), 2, V(pLane)), I('v_mov_b32', V(pT2), 0), I('v_mov_b32', V(pA), 0x10000),
            I('buffer_store_dword', V(pT2), V(pT1), S(SWS, 4), S(sSt), mods="offen sc1", tag=('p3', False))]
    for j in range(18):
        pro += pbarrier(j) + (stamp(cfg, 2) if j == 0 else [])
        rd = []
        if j in XNEED[:4]:
            D = XNEED.index(j)
            rd = [I('ds_read_b128', XF(k, rt), V(pC), mods=f"offset:{XLOC[D] - L_RING + (rt // 2) * TILE + (rt % 2) * 4 * PIECE + 64 * i}") for i, k in enumerate(xks(D)) for rt in range(6)]
        pro += rd + fixup(pro_items(j, cfg, 'Q'))
        if j == 3:
            pro += [I('s_mov_b32', S(SDBG + 2), 256), I('s_mov_b32', S(SDBG + 3), '0x20000'), I('s_lshl_b32', S(sT0), S(sGam), 2),
                    I('s_mov_b64', 'exec', 1), I('buffer_atomic_add', V(pA), V(pT2), S(SDBG, 4), S(sT0), mods="offen offset:128"), I('s_mov_b64', 'exec', -1)]
    pro += [wq_wait(1)] + rd_wq(0) + stamp(cfg, 1)
    rnd = [Label("L_qround")] + q_round(cfg) + [I('s_add_u32', S(sR), S(sR), 1), I('s_cmp_lt_u32', S(sR), 3), I('s_cbranch_scc1', 'L_qround')]
    last = []
    for s in range(24):
        last += barrier(s, 0 if s == 0 else None) + fixup(dma_after(s, True, cfg, 'Q'))
        if s == 1:
            last += [I('s_lshl_b32', S(sPf), S(sGam), 2), I('v_mov_b32', V(16), 0), I('v_mov_b32', V(17), 4), I('v_mov_b32', V(20), 1)] + lane_id(19) + [
                     I('v_lshlrev_b32', V(19), 8, V(19)), I('s_lshl_b32', S(sT0), S(sG), 2), I('v_add_u32', V(19), S(sT0), V(19)),
                     I('buffer_load_dword', V(18), V(16), S(SDBG, 4), S(sPf), mods="offen offset:128 sc1", tag=('rdy', True))]
        if s == 6:
            last += [Wait(vm=lambda op, ctx: op['stream'] == 'rdy'), I('s_mov_b32', S(sMask), 0), Label('L_rdy'), I('v_readfirstlane_b32', S(sT0), V(18)), I('s_add_u32', S(sMask), S(sMask), 1),
                     I('s_and_b32', S(sT0), S(sT0), 0x70000), I('s_cmp_eq_u32', S(sT0), 0), I('s_cbranch_scc1', 'L_rdyok'),
                     NoTrace([I('buffer_load_dword', V(18), V(16), S(SDBG, 4), S(sPf), mods="offen offset:128 sc1"), I('s_waitcnt', 'vmcnt(0)'), I('s_cmp_lt_u32', S(sMask), 0x100000), I('s_cbranch_scc1', 'L_rdy')]),
                     Label('L_rdyok')]
        if s == cfg.tks:
            last += [I('s_mov_b64', 'exec', 1), I('buffer_atomic_add', V(17), V(16), S(SDBG, 4), S(sPf), mods="offen offset:128 sc0", tag=('tk', True)), I('s_mov_b64', 'exec', -1)]
        if s == cfg.fpf:
            last += lane_id(vDWs) + [I('v_lshlrev_b32', V(vDWs), 4, V(vDWs))] + head_of(0, sT0) + [I('s_mul_i32', S(sT0), S(sT0), 147456), I('s_mul_i32', S(sT1), S(sB), 9216),
                     I('s_add_u32', S(sT0), S(sT0), S(sT1)), I('s_mov_b32', 'm0', L_WQ), I('s_nop', 0)]
            for i in range(9):
                last += [I('buffer_load_dwordx4', V(vDWs), S(SWO, 4), S(sT0), mods="offen lds"), I('s_add_u32', S(sT0), S(sT0), 1024)]
    prog = pro + [Loop(3, rnd)] + stamp(cfg, 3) + last
    prog += [I('s_and_b32', S(sT0), S(sSt), hex(0xfffff800)), I('s_waitcnt', 'vmcnt(0)'), I('s_mov_b64', 'exec', 1), I('ds_write_b32', V(16), V(17)), I('s_waitcnt', 'lgkmcnt(0)'),
             I('s_barrier'), I('s_mov_b64', 'exec', 255), I('buffer_store_dword', V(20), V(19), S(SWS, 4), S(sT0), mods="offen sc1"), I('s_mov_b64', 'exec', -1)] + stamp(cfg, 4)
    prog += [NoTrace([I('s_branch', 'L_reduce')]), Seq(cfg.red)]
    return prog

def common_prologue(cfg):
    a = cfg.a
    o = [I('s_cmp_ge_u32', S(2), 256), I('s_cbranch_scc1', 'L_exit'),
         I('s_load_dwordx16', S(56, 16), S(0, 2), 0), I('s_load_dwordx4', S(72, 4), S(0, 2), 64), I('s_load_dwordx2', S(SWS, 2), S(0, 2), 96)]
    o += stamp(cfg, 0)
    o += [I('v_lshrrev_b32', V(vT0), 6, V(0)), I('v_and_b32', V(pLane), 63, V(0)), I('v_readfirstlane_b32', S(sW), V(vT0)),
          I('s_and_b32', S(sT0), S(2), 7)] + ([I('s_xor_b32', S(sT0), S(sT0), 4)] if cfg.map == 1 else []) + ([I('s_lshr_b32', S(sBlk), S(sT0), 2), I('s_and_b32', S(sG), S(sT0), 3)] if cfg.map < 2 else [I('s_and_b32', S(sBlk), S(sT0), 1), I('s_lshr_b32', S(sG), S(sT0), 1)]) + [
          I('s_lshr_b32', S(sT1), S(2), 3), I('s_lshr_b32', S(sB), S(sT1), 1),
          I('v_lshrrev_b32', V(vT0), 4, V(pLane)), I('v_and_b32', V(pT1), 15, V(pLane)),
          I('v_xor_b32', V(pT2), V(pT1), V(vT0)), I('v_lshlrev_b32', V(pT2), 4, V(pT2)),
          I('v_mul_u32_u24', V(pX), 1152, V(vT0)), I('v_add_u32', V(pX), V(pX), V(pT2)),
          I('s_mul_i32', S(sT0), S(sW), 8 * 1152), I('v_add_u32', V(pX), S(sT0), V(pX)),
          I('s_mul_i32', S(sWX), S(sW), 2 * PIECE), I('s_mul_i32', S(sXb), S(sB), 110592), I('s_mul_i32', S(sWP), S(sW), PT),
          I('s_and_b32', S(sT1), S(sT1), 1), I('s_lshl_b32', S(sG), S(sG), 1), I('s_add_u32', S(sG), S(sG), S(sT1)),
          I('s_and_b32', S(sHr), S(sB), cfg.rot), I('s_mov_b32', S(sR), 0)] + head_of(0, sT0) + [I('s_lshl_b32', S(sPq), S(sT0), 8),
          I('v_and_b32', V(pA), 7, V(pLane)), I('v_lshlrev_b32', V(pDQ), 4, V(pA)),
          I('v_lshrrev_b32', V(pA), 5, V(pLane)), I('v_lshl_add_u32', V(pDQ), V(pA), 17, V(pDQ)),
          I('v_bfe_u32', V(pA), V(pLane), 3, 1), I('v_lshl_add_u32', V(pDQ), V(pA), 16, V(pDQ)), I('v_lshl_add_u32', V(pX2), V(pA), 31, V(pX)),
          I('v_bfe_u32', V(pA), V(pLane), 4, 1), I('v_lshl_add_u32', V(pDQ), V(pA), 15, V(pDQ)),
          I('s_lshl_b32', S(sT0), S(sW), 13), I('v_add_u32', V(pDQ), S(sT0), V(pDQ)),
          I('s_mov_b32', S(SX + 2), 1769472), I('s_mov_b32', S(SX + 3), '0x20000'), I('s_mov_b32', S(SWQ + 2), WSIZE), I('s_mov_b32', S(SWQ + 3), '0x20000'),
          I('s_waitcnt', 'lgkmcnt(0)'), I('s_cmp_eq_u32', S(sBlk), 0),
          I('s_cselect_b32', S(SX), S(56), S(66)), I('s_cselect_b32', S(SX + 1), S(57), S(67)), I('s_cselect_b32', S(SWQ), S(62), S(72)), I('s_cselect_b32', S(SWQ + 1), S(63), S(73)),
          I('s_cselect_b32', S(SK), S(58), S(68)), I('s_cselect_b32', S(SK + 1), S(59), S(69)), I('s_cselect_b32', S(SV), S(60), S(70)), I('s_cselect_b32', S(SV + 1), S(61), S(71)),
          I('s_cselect_b32', S(SWO), S(64), S(74)), I('s_cselect_b32', S(SWO + 1), S(65), S(75))]
    o += fixup(pro_items(-1, cfg, None))
    o += [I('s_lshl_b32', S(sGam), S(sBlk), 4), I('s_add_u32', S(sGam), S(sGam), S(sB)),
          I('s_mov_b32', S(sT), hex(f2u(cfg.thr))), I('s_mov_b32', S(sC), hex(f2u(1.4426950408889634 / 128 ** 0.5))),
          I('s_mul_i32', S(sWK), S(sW), a * PIECE), I('s_mul_i32', S(sWT), S(sW), a * PT), I('v_lshlrev_b32', V(pLin), 4, V(pLane)),
          I('v_lshlrev_b32', V(vDV), 11, V(vT0)), I('v_lshl_add_u32', V(vDV), V(pT1), 4, V(vDV)),
          I('v_lshl_add_u32', V(vDK), V(vT0), 8, V(pT2)),
          I('s_mul_i32', S(sT0), S(sW), a * 1024), I('v_add_u32', V(vDK), S(sT0), V(vDK)),
          I('s_mul_i32', S(sT0), S(sW), a * 256), I('v_add_u32', V(vDV), S(sT0), V(vDV)),
          I('v_lshrrev_b32', V(vT0), 3, V(pLane)), I('v_mul_u32_u24', V(vDW), 9216, V(vT0)), I('v_and_b32', V(vT0), 7, V(pLane)),
          I('v_lshl_add_u32', V(vDW), V(vT0), 4, V(vDW)), I('s_mul_i32', S(sT0), S(sW), a * 1152), I('v_add_u32', V(vDW), S(sT0), V(vDW)),
          I('v_bfe_u32', V(vT0), V(pLane), 2, 2), I('v_mul_u32_u24', V(pKl), PIECE, V(vT0)),
          I('v_and_b32', V(vT0), 3, V(pLane)), I('v_lshl_add_u32', V(pKl), V(vT0), 8, V(pKl)),
          I('v_lshrrev_b32', V(pT1), 4, V(pLane)), I('v_xor_b32', V(pT1), V(pT1), V(vT0)), I('v_lshl_add_u32', V(pKl), V(pT1), 4, V(pKl)),
          I('v_bfe_u32', V(pT1), V(pLane), 2, 3), I('v_mul_u32_u24', V(pVl), PT, V(pT1)), I('v_lshl_add_u32', V(pVl), V(vT0), 3, V(pVl)),
          I('v_lshrrev_b32', V(pT1), 5, V(pLane)), I('v_lshl_add_u32', V(pWol), V(pT1), 7, V(pVl)), I('v_lshl_add_u32', V(pVl), V(pT1), 8, V(pVl)),
          I('v_lshlrev_b32', V(pWl), 3, V(vT0)), I('v_lshl_add_u32', V(pWl), V(pT1), 9, V(pWl)),
          I('v_bfe_u32', V(pT1), V(pLane), 4, 1), I('v_lshl_add_u32', V(pWl), V(pT1), 7, V(pWl)),
          I('v_bfe_u32', V(pT1), V(pLane), 2, 2), I('v_mul_u32_u24', V(pT1), PT, V(pT1)), I('v_add_u32', V(pWl), V(pWl), V(pT1)),
          I('s_mov_b32', S(SK + 2), 67108864), I('s_mov_b32', S(SK + 3), '0x20000'), I('s_mov_b32', S(SV + 2), 67108864), I('s_mov_b32', S(SV + 3), '0x20000'),
          I('s_mov_b32', S(SWO + 2), 0), I('s_mov_b32', S(SWO + 3), '0x20000'), I('s_mov_b32', S(SWS + 2), WS_BYTES), I('s_mov_b32', S(SWS + 3), '0x20000'),
          I('s_mov_b32', S(SPF), S(SWO)), I('s_mov_b32', S(SPF + 1), S(SWO + 1)), I('s_mov_b32', S(SPF + 2), WSIZE), I('s_mov_b32', S(SPF + 3), '0x20000'),
          I('s_lshr_b32', S(sT0), S(sG), 1), I('s_mul_i32', S(sT0), S(sT0), 1179648), I('s_lshr_b32', S(sT1), S(2), 3), I('s_lshl_b32', S(sT1), S(sT1), 2), I('s_add_u32', S(sT1), S(sT1), S(sW)),
          I('s_mul_i32', S(sT1), S(sT1), 9216), I('s_add_u32', S(sPf0), S(sT0), S(sT1)), I('s_mov_b32', S(sWoo), 73728)] + setup_kv(0)
    return o

def hook(it, ctx, vq, lq):
    t = getattr(it, 'tag', None)
    if t is None: return None
    if t[0] == 'mbar':
        if any(o['stream'] == 'main' and o['grp'] <= grp(ctx, 'need') for o in vq): return "main loads outstanding at barrier"
        if grp(ctx, 'main') < grp(ctx, 'need') and grp(ctx, 'main') < 217: return "needed granule not issued"
    if t[0] == 'xbar':
        if any(o['stream'] is not None and o['stream'][0] == 'p' and int(o['stream'][1:]) <= grp(ctx, 'xbar') for o in vq): return "start-up loads outstanding at barrier"
        if lq: return "LDS reads outstanding at start-up barrier"
    if t[0] == 'wqr':
        if any(o['stream'] == 'wq' and o['grp'] <= grp(ctx, 'wqr') for o in vq): return "wq load outstanding at read"
    if t[0] == 'wq':
        g = grp(ctx, 'wq') - WQRING
        if grp(ctx, 'wqr') < g or any(o['stream'] == 'wqr' and o['grp'] <= g for o in lq): return "wq ring overwrite before read done"
    if t[0] == 'main' and t[1]:
        if grp(ctx, 'main') - NG > grp(ctx, 'free') - 1: return "main ring overwrite too early"
    return None

def strip_lines(t, cfg):
    o = []; inq = False
    for l in t:
        w = l.split()
        op = w[0] if w else ''
        if op == 'L_qround:': inq = True
        if 'qmfma0' in cfg.strip and inq and op.startswith(('v_mfma', 'ds_read', 'v_mul', 'v_cvt')): continue
        if 'dma' in cfg.strip and op.startswith('buffer_load') and 'lds' in w: l = "    s_nop 0\n    s_nop 0"
        if 'mfma' in cfg.strip and op.startswith('v_mfma'): l = "    s_nop 0\n    s_nop 0"
        if 'exp' in cfg.strip and op.startswith('v_exp'): l = "    s_nop 0"
        if 'ds' in cfg.strip and op.startswith('ds_read'): l = "    s_nop 0\n    s_nop 0"
        if 'bar' in cfg.strip and op.startswith('s_barrier'): l = "    s_nop 0"
        if 'rare' in cfg.strip and op.startswith('s_cbranch_vccnz'): l = "    s_nop 0"
        if l.strip() == '; mark': continue
        o.append(l)
    return o

def generate(path, cfg):
    global rare_sites
    rare_sites = []
    check_psched()
    com = common_prologue(cfg)
    pa = build_a(cfg); pq = build_q(cfg)
    errs = []
    for nm, prog in (("A", com + pa), ("Q", com + pq)):
        tr = []; flatten(prog, tr); resolve_waits(tr)
        errs += check_trace(tr, nm, hook)
        print(nm, "trace len", len(tr), "est cycles", cost(tr), "barriers", sum(1 for x in tr if x.kind == 'barrier'), file=sys.stderr)
    tr = []; flatten(cfg.a_round, tr); print("A round est", cost(tr), file=sys.stderr)
    for par in range(2):
        errs += check_trace([I(MF, V(O, 4), V(32, 4), V(SB[1 - par], 4), V(O, 4))] + rare_body(par) + [I(MF, V(SB[1 - par], 4), V(32, 4), V(QF, 4), V(NEGM, 4))], "rare")
    if errs:
        for e in errs[:40]: print("ERR", e, file=sys.stderr)
        raise SystemExit(f"{len(errs)} errors")
    a = Asm()
    file_begin(a, [(KNAME, 256, 256, L_END)])
    kernel_begin(a, KNAME)
    t = []
    emit_text(com, t)
    emit_text([I('s_cmp_eq_u32', S(sW), 3), I('s_cbranch_scc1', 'L_qwave')], t)
    emit_text(pa, t)
    t.append("L_qwave:")
    emit_text(pq, t)
    t.append("L_exit:\n    s_endpgm")
    a("\n".join(strip_lines(t, cfg)))
    kernel_desc(a, KNAME, 512, 256)
    open(path, "w").write(a.text())
    import subprocess
    r = subprocess.run(["clang", "-x", "assembler", "-target", "amdgcn-amd-amdhsa", "-mcpu=gfx950", "-c", path, "-o", "chk.o"], capture_output=True, text=True)
    if r.returncode: raise SystemExit(r.stderr[:2000])
    r = subprocess.run(["llvm-objdump", "-h", "chk.o"], capture_output=True, text=True)
    print([l for l in r.stdout.splitlines() if '.text' in l][0].split()[2], file=sys.stderr)

if __name__ == "__main__":
    ap = argparse.ArgumentParser()
    ap.add_argument("out")
    ap.add_argument("--stamps", action="store_true"); ap.add_argument("--cyc", action="store_true"); ap.add_argument("--trace", type=int, default=0)
    ap.add_argument("--kvflags", default="nt"); ap.add_argument("--wflags", default=""); ap.add_argument("--pflags", default=""); ap.add_argument("--woflags", default=""); ap.add_argument("--fflags", default="")
    ap.add_argument("--stflags", default="sc1"); ap.add_argument("--rdflags", default="sc1")
    ap.add_argument("--thr", type=float, default=10.0); ap.add_argument("--strip", default="")
    ap.add_argument("--pf", type=int, default=1); ap.add_argument("--ra", type=int, default=5); ap.add_argument("--a", type=int, default=2)
    ap.add_argument("--dbgst", action="store_true"); ap.add_argument("--rot", type=int, default=3); ap.add_argument("--hrot", type=int, default=1); ap.add_argument("--map", type=int, default=0); ap.add_argument("--r0", type=int, default=1); ap.add_argument("--jit", type=int, default=0); ap.add_argument("--jits", type=int, default=2); ap.add_argument("--apf", type=int, default=0); ap.add_argument("--apf1", default="nt"); ap.add_argument("--apfd", type=int, default=2); ap.add_argument("--bpf", type=int, default=-1); ap.add_argument("--fpf", type=int, default=-1); ap.add_argument("--oflags", default=""); ap.add_argument("--k0", type=int, default=26); ap.add_argument("--hspan", type=float, default=0.8); ap.add_argument("--tks", type=int, default=22); ap.add_argument("--bmode", type=int, default=0); ap.add_argument("--bpos", type=int, default=17); ap.add_argument("--bstep", type=int, default=0); ap.add_argument("--xflags", default=""); ap.add_argument("--hstart", type=float, default=0.0); ap.add_argument("--qstart", type=float, default=0.0); ap.add_argument("--jit0", type=int, default=13); ap.add_argument("--wpf", type=int, default=0); ap.add_argument("--nge", type=int, default=9); ap.add_argument("--psleep", type=int, default=2); ap.add_argument("--la", type=int, default=6); ap.add_argument("--frac", type=float, default=0.5); ap.add_argument("--qspan", type=float, default=0.8)
    x = ap.parse_args()
    cfg = Cfg()
    for k, v in vars(x).items(): setattr(cfg, k, v)
    cfg.clk = 's_memtime' if x.cyc else 's_memrealtime'; cfg.strip = x.strip.split(',')
    NGE[0] = x.nge
    generate(x.out, cfg)
```
